```python
import torch

def _softmax(x, axis=-1):
    return torch.softmax(x, dim=axis)
def _gelu(x):
    return torch.nn.functional.gelu(x, approximate="tanh")
def _silu(x):
    return torch.nn.functional.silu(x)
def _sigmoid(x):
    return torch.sigmoid(x)
def _layernorm(x, axis=-1, eps=1e-5):
    m = x.mean(dim=axis, keepdim=True)
    v = x.var(dim=axis, keepdim=True, unbiased=False)
    return (x - m) / torch.sqrt(v + eps)
def _scatter_add(tgt, idx, src, axis=0):
    return tgt.clone().index_add_(axis, idx, src)
def _segment_sum(src, seg, n):
    out = torch.zeros((n,) + src.shape[1:], dtype=src.dtype)
    return out.index_add_(0, seg, src)
def _pad(x, pw):
    flat = tuple(v for pair in reversed(pw) for v in pair)
    return torch.nn.functional.pad(x, flat)

kernel_name = 'concat_heads__ssm_conv_s4__grouped_kv_mqa__prompt'

def setup_inputs():

    _w = (lambda a: (lambda t: t.to(torch.bfloat16) if t.is_floating_point() else t)(torch.as_tensor(a)))
    def _A_setup():
        B, L, D, N = 1, 2048, 512, 128
        A_re = -(lambda _x: torch.exp(torch.as_tensor(_x)))((lambda *s: torch.randn(*s, dtype=torch.bfloat16) * 3.2)(D, N))
        A_im = torch.pi * (lambda *s: torch.randn(*s, dtype=torch.bfloat16) * 0.05)(D, N)
        B_re = (lambda *s: torch.randn(*s, dtype=torch.bfloat16) * 0.1)(D, N)
        B_im = (lambda *s: torch.randn(*s, dtype=torch.bfloat16) * 0.1)(D, N)
        C_re = (lambda *s: torch.randn(*s, dtype=torch.bfloat16) * 0.1)(D, N)
        C_im = (lambda *s: torch.randn(*s, dtype=torch.bfloat16) * 0.1)(D, N)
        log_dt = (lambda *s: torch.randn(*s, dtype=torch.bfloat16) * 0.05)(D) * 0.5 - 4.0
        Dskip = (lambda *s: torch.randn(*s, dtype=torch.bfloat16) * 0.05)(D)
        return {
            "u": _w((lambda *s: torch.randn(*s, dtype=torch.bfloat16) * 0.05)(B, L, D)),
            "A_re": _w(A_re),
            "A_im": _w(A_im),
            "B_re": _w(B_re),
            "B_im": _w(B_im),
            "C_re": _w(C_re),
            "C_im": _w(C_im),
            "log_dt": _w(log_dt),
            "Dskip": _w(Dskip),
        }
    _A_in = _A_setup()

    def _B_setup():
        B, S, D, H = 1, 2048, 512, 32
        Dh = D // H
        return {
            "x": _w((lambda *s: torch.randn(*s, dtype=torch.bfloat16) * 0.05)(B, S, D)),
            "wq": _w((lambda *s: torch.randn(*s, dtype=torch.bfloat16) * 0.8)(D, H * Dh)),
            "wk": _w((lambda *s: torch.randn(*s, dtype=torch.bfloat16) * 0.8)(D, Dh)),
            "wv": _w((lambda *s: torch.randn(*s, dtype=torch.bfloat16) * 0.05)(D, Dh)),
            "wo": _w((lambda *s: torch.randn(*s, dtype=torch.bfloat16) * 0.05)(H * Dh, D)),
        }
    _B_in = _B_setup()

    return {
        "A_u": _A_in["u"],
        "A_A_re": _A_in["A_re"],
        "A_A_im": _A_in["A_im"],
        "A_B_re": _A_in["B_re"],
        "A_B_im": _A_in["B_im"],
        "A_C_re": _A_in["C_re"],
        "A_C_im": _A_in["C_im"],
        "A_log_dt": _A_in["log_dt"],
        "A_Dskip": _A_in["Dskip"],
        "B_x": _B_in["x"],
        "B_wq": _B_in["wq"],
        "B_wk": _B_in["wk"],
        "B_wv": _B_in["wv"],
        "B_wo": _B_in["wo"],
    }

def reference(A_u, A_A_re, A_A_im, A_B_re, A_B_im, A_C_re, A_C_im, A_log_dt, A_Dskip, B_x, B_wq, B_wk, B_wv, B_wo):
    def _A_ref(u, A_re, A_im, B_re, B_im, C_re, C_im, log_dt, Dskip):
        Bsz, L, D = u.shape
        dt = torch.exp(log_dt)[:, None]
        A = A_re + 1j * A_im
        Bc = B_re + 1j * B_im
        Cc = C_re + 1j * C_im
        logdA = dt * A
        dB = dt * Bc
        l = (lambda x, dt: x.to(dt))(torch.arange(L), A_re.dtype)
        P = torch.exp(logdA[:, :, None] * l[None, None, :])
        K = torch.einsum("dn,dnl,dn->dl", Cc, P, dB).real
        L2 = 2 * L
        Kp = _pad(K, ((0, 0), (0, L)))
        up = (lambda x, *d: x.permute(*d))(u, 0, 2, 1)
        up = _pad(up, ((0, 0), (0, 0), (0, L)))
        Kf = (lambda x, axes=(-2,-1): torch.fft.rfft2(x.float(), dim=axes))(Kp[:, None, :], axes=(-2, -1))
        Uf = (lambda x, axes=(-2,-1): torch.fft.rfft2(x.float(), dim=axes))(up[:, :, None, :], axes=(-2, -1))
        Yf = Uf * Kf[None, :, :, :]
        y = (lambda x, s, axes=(-2,-1): torch.fft.irfft2(x, s=s, dim=axes).to(torch.bfloat16))(Yf, (1, L2), axes=(-2, -1))[:, :, 0, :L]
        y = (lambda x, *d: x.permute(*d))(y, 0, 2, 1) + u * Dskip[None, None, :]
        return y

    def _B_ref(x, wq, wk, wv, wo):
        B, S, D = x.shape
        H = 32
        Dh = D // H
        q = (lambda x, *d: x.permute(*d))((x @ wq).reshape(B, S, H, Dh), 0, 2, 1, 3)
        k = x @ wk
        v = x @ wv
        scores = torch.einsum("bhqd,bkd->bhqk", q, k) * (Dh ** -0.5)
        p = _softmax(scores, axis=-1)
        o = torch.einsum("bhqk,bkd->bhqd", p, v)
        return (lambda x, *d: x.permute(*d))(o, 0, 2, 1, 3).reshape(B, S, H * Dh) @ wo

    a = _A_ref(A_u, A_A_re, A_A_im, A_B_re, A_B_im, A_C_re, A_C_im, A_log_dt, A_Dskip)
    b = _B_ref(B_x, B_wq, B_wk, B_wv, B_wo)
    return torch.concatenate([a, b], axis=-1)
```

```python
import sys, struct, math

NAME = "concat_heads__ssm_conv_s4__grouped_kv_mqa__prompt"

def f2u(x):
    return struct.unpack("<I", struct.pack("<f", x))[0]

WS_QF = 0
WS_UT = 2 << 20
WS_WT = 4 << 20
WS_KV = WS_WT + (512 << 10)
WS_KN = WS_KV + (128 << 10)
WS_SIZE = WS_KN + 4096

L_G = 0
L_XY = 65536
XY_ROW = 544
XY_CH = 32 * XY_ROW
L_X = L_XY
L_Y = L_XY + 2 * XY_CH
L_WKV = 135168
L_UTILE = 151552
L_WOT = 159744
KC_COPY = 4160
KC_CH = 4 * KC_COPY
L_UR = 82432
L_KC = 97792
L_PB = 131072
L_KV = 0
L_XB = 131072
L_OA = L_XB + 8 * 2304
LDS_BYTES = 163840
EARLY_STEPS = 20

S_U, S_ARE, S_AIM, S_BRE, S_BIM, S_CRE, S_CIM, S_LDT = 16, 18, 20, 22, 24, 26, 28, 30
S_DSK, S_X, S_WQ, S_WK, S_WV, S_WO, S_OUT, S_DBG, S_WS = 32, 34, 36, 38, 40, 42, 44, 46, 48
R_WS, R_OUT, R_X, R_WQ, R_U, R_WO, R_WKV = 52, 56, 60, 64, 68, 72, 76
S_LIN, S_WAVE, S_RB, S_CB, S_C0 = 4, 5, 6, 7, 8
S_T0, S_T1, S_T2, S_T3 = 9, 10, 11, 12
S_CNT = 13
S_VMASK = 14
S_RET = 80
S_SAVE = 82
S_DT, S_DS = 84, 85
S_K0, S_K1, S_K2, S_K3 = 86, 87, 88, 89
S_KAP = 90
S_N1, S_N2 = 91, 92


class Asm:
    def __init__(self):
        self.lines = []
        self.uid = 0
    def __call__(self, s):
        for ln in s.split("\n"):
            ln = ln.strip()
            if ln:
                self.lines.append(("" if ln.endswith(":") else "    ") + ln)
    def c(self, s):
        self.lines.append("    ; " + s)
    def label(self, base):
        self.uid += 1
        return f"L_{base}_{self.uid}"
    def text(self):
        return "\n".join(self.lines) + "\n"

def vr(a, n):
    return f"v[{a}:{a+n-1}]"
def sr(a, n):
    return f"s[{a}:{a+n-1}]"


def srd(a, R, P, size):
    a(f"""s_mov_b32 s{R}, s{P}
    s_mov_b32 s{R+1}, s{P+1}
    s_mov_b32 s{R+2}, {size:#x}
    s_mov_b32 s{R+3}, 0x00020000""")


def prologue(a, endlabel):
    a(f"""s_cmp_ge_u32 s2, 256
    s_cbranch_scc1 {endlabel}
    s_load_dwordx16 s[16:31], s[0:1], 0
    s_load_dwordx16 s[32:47], s[0:1], 64
    s_load_dwordx2 s[48:49], s[0:1], 128
    s_and_b32 s{S_T0}, s2, 7
    s_lshl_b32 s{S_T0}, s{S_T0}, 5
    s_lshr_b32 s{S_T1}, s2, 3
    s_add_u32 s{S_LIN}, s{S_T0}, s{S_T1}
    s_lshr_b32 s{S_RB}, s{S_LIN}, 3
    s_and_b32 s{S_CB}, s{S_LIN}, 7
    v_lshrrev_b32 v2, 6, v0
    v_and_b32 v1, 63, v0
    v_readfirstlane_b32 s{S_WAVE}, v2
    s_waitcnt lgkmcnt(0)""")
    srd(a, R_WS, S_WS, WS_SIZE)
    srd(a, R_OUT, S_OUT, 4 << 20)


def g_setup(a):
    srd(a, R_X, S_X, 2 << 20)
    srd(a, R_WQ, S_WQ, 512 << 10)
    srd(a, R_U, S_U, 2 << 20)
    srd(a, R_WO, S_WO, 512 << 10)
    a(f"""s_bitcmp1_b32 s{S_CB}, 0
    s_cselect_b32 s{R_WKV}, s{S_WV}, s{S_WK}
    s_cselect_b32 s{R_WKV+1}, s{S_WV+1}, s{S_WK+1}
    s_mov_b32 s{R_WKV+2}, 0x4000
    s_mov_b32 s{R_WKV+3}, 0x00020000""")
    a.c("first chunk c0 = (cb + 2 rb) & 7")
    a(f"""s_lshl_b32 s{S_T0}, s{S_RB}, 1
    s_add_u32 s{S_C0}, s{S_T0}, s{S_CB}
    s_and_b32 s{S_C0}, s{S_C0}, 7""")
    a.c("DMA source offsets: row = tid>>3 (0..63), p' = tid&7")
    a(f"""v_lshrrev_b32 v3, 3, v0
    v_and_b32 v4, 7, v0
    v_bfe_u32 v5, v3, 1, 3
    v_xor_b32 v5, v5, v4
    v_lshlrev_b32 v5, 4, v5
    v_lshl_add_u32 v10, v3, 10, v5""")
    a(f"""v_and_b32 v5, 2, v3
    v_bfe_u32 v6, v3, 3, 1
    v_lshl_or_b32 v5, v6, 2, v5
    v_xor_b32 v5, v5, v4
    v_lshlrev_b32 v5, 4, v5
    v_lshl_add_u32 v11, v3, 10, v5""")
    a(f"v_lshlrev_b32 v12, 4, v1")


def dma(a, voff, R, soff, lds_sgpr_or_imm):
    a(f"""s_mov_b32 m0, {lds_sgpr_or_imm}
    s_nop 0
    buffer_load_dwordx4 {voff}, {sr(R,4)}, {soff} offen lds""")


def g_issue_small(a):
    a.c("u tile DMA")
    a(f"""s_lshl_b32 s{S_T3}, s{S_WAVE}, 10
    s_and_b32 s{S_T0}, s{S_LIN}, 31
    s_lshl_b32 s{S_T0}, s{S_T0}, 16
    s_lshr_b32 s{S_T1}, s{S_LIN}, 5
    s_lshl_b32 s{S_T1}, s{S_T1}, 7
    s_add_u32 s{S_T0}, s{S_T0}, s{S_T1}
    s_add_u32 s{S_T2}, s{S_T3}, {L_UTILE}""")
    dma(a, "v11", R_U, f"s{S_T0}", f"s{S_T2}")
    a.c("wo tile DMA (waves 0,1)")
    skip = a.label("nowo")
    a(f"""s_cmp_ge_u32 s{S_WAVE}, 2
    s_cbranch_scc1 {skip}
    s_lshl_b32 s{S_T0}, s{S_RB}, 14
    s_lshl_b32 s{S_T1}, s{S_CB}, 7
    s_add_u32 s{S_T0}, s{S_T0}, s{S_T1}
    s_add_u32 s{S_T2}, s{S_T3}, {L_WOT}""")
    dma(a, "v11", R_WO, f"s{S_T0}", f"s{S_T2}")
    a(f"{skip}:")


def g_issue_wkv(a):
    a.c("wkv DMA: wave v loads slot v = chunk (c0+v)&7, 2KB")
    a(f"""s_add_u32 s{S_T0}, s{S_C0}, s{S_WAVE}
    s_and_b32 s{S_T0}, s{S_T0}, 7
    s_lshl_b32 s{S_T0}, s{S_T0}, 11
    s_lshl_b32 s{S_T2}, s{S_WAVE}, 11
    s_add_u32 s{S_T2}, s{S_T2}, {L_WKV}
    s_mov_b32 m0, s{S_T2}
    s_nop 0
    buffer_load_dwordx4 v12, {sr(R_WKV,4)}, s{S_T0} offen lds
    buffer_load_dwordx4 v12, {sr(R_WKV,4)}, s{S_T0} offen offset:1024 lds""")


def g_issue_slots(a, slots):
    for s in slots:
        a.c(f"G slot {s}")
        a(f"""s_add_u32 s{S_T0}, s{S_C0}, {s}
        s_and_b32 s{S_T0}, s{S_T0}, 7
        s_lshl_b32 s{S_T1}, s{S_T0}, 7
        s_lshl_b32 s{S_T2}, s{S_RB}, 16
        s_add_u32 s{S_T1}, s{S_T1}, s{S_T2}
        s_lshl_b32 s{S_T3}, s{S_WAVE}, 10
        s_add_u32 s{S_T3}, s{S_T3}, {L_G + s*16384}
        s_mov_b32 m0, s{S_T3}
        s_lshl_b32 s{S_T0}, s{S_T0}, 16
        buffer_load_dwordx4 v10, {sr(R_X,4)}, s{S_T1} offen lds
        s_lshl_b32 s{S_T2}, s{S_CB}, 7
        s_add_u32 s{S_T3}, s{S_T3}, 8192
        s_mov_b32 m0, s{S_T3}
        s_add_u32 s{S_T0}, s{S_T0}, s{S_T2}
        buffer_load_dwordx4 v11, {sr(R_WQ,4)}, s{S_T0} offen lds""")


def g_addr(a):
    a(f"""v_lshrrev_b32 v2, 4, v1
    v_bfe_u32 v3, v1, 2, 2
    v_and_b32 v4, 3, v1
    v_lshl_add_u32 v5, v2, 3, v3
    v_lshrrev_b32 v6, 1, v3
    v_and_b32 v7, 1, v2
    v_lshl_or_b32 v6, v7, 1, v6
    s_and_b32 s{S_T0}, s{S_WAVE}, 3
    v_xor_b32 v6, s{S_T0}, v6
    v_lshlrev_b32 v6, 5, v6
    v_lshl_add_u32 v6, v4, 3, v6
    v_lshl_add_u32 v13, v5, 7, v6""")
    a.c("KV w base: (8g+r)*32 + c4*8")
    a(f"""v_lshlrev_b32 v6, 3, v4
    v_lshl_add_u32 v18, v5, 5, v6
    v_add_u32 v18, {L_WKV}, v18""")
    a.c("x bases")
    a(f"""v_and_b32 v3, 15, v1
    v_lshrrev_b32 v4, 1, v3
    v_xor_b32 v4, v4, v2
    v_lshlrev_b32 v4, 4, v4
    v_lshl_add_u32 v4, v3, 7, v4
    s_lshr_b32 s{S_T0}, s{S_WAVE}, 2
    s_lshl_b32 s{S_T0}, s{S_T0}, 12
    v_add_u32 v14, s{S_T0}, v4
    v_xor_b32 v15, 64, v14
    s_lshr_b32 s{S_T0}, s{S_CB}, 1
    s_lshl_b32 s{S_T0}, s{S_T0}, 11
    v_add_u32 v16, s{S_T0}, v4
    v_xor_b32 v17, 64, v16""")


def phase_u_wt(a, sc):
    a.c("---- U transpose ----")
    a(f"""s_lshr_b32 s{S_T0}, s{S_WAVE}, 2
    s_lshl_b32 s{S_T0}, s{S_T0}, 12
    s_add_u32 s{S_T0}, s{S_T0}, {L_UTILE}
    v_add_u32 v2, s{S_T0}, v13
    ds_read_b64_tr_b16 v[20:21], v2
    ds_read_b64_tr_b16 v[22:23], v2 offset:512
    v_and_b32 v3, 15, v1
    v_lshlrev_b32 v3, 12, v3
    v_and_b32 v4, 48, v1
    v_add_u32 v3, v3, v4
    s_lshr_b32 s{S_T0}, s{S_LIN}, 5
    s_lshl_b32 s{S_T0}, s{S_T0}, 2
    s_and_b32 s{S_T1}, s{S_WAVE}, 3
    s_add_u32 s{S_T0}, s{S_T0}, s{S_T1}
    s_lshl_b32 s{S_T0}, s{S_T0}, 16
    s_and_b32 s{S_T1}, s{S_LIN}, 31
    s_lshl_b32 s{S_T1}, s{S_T1}, 7
    s_add_u32 s{S_T0}, s{S_T0}, s{S_T1}
    s_lshr_b32 s{S_T1}, s{S_WAVE}, 2
    s_lshl_b32 s{S_T1}, s{S_T1}, 6
    s_add_u32 s{S_T0}, s{S_T0}, s{S_T1}
    s_add_u32 s{S_T0}, s{S_T0}, {WS_UT}
    s_waitcnt lgkmcnt(0)
    buffer_store_dwordx4 v[20:23], v3, {sr(R_WS,4)}, s{S_T0} offen {sc}""")
    a.c("---- wo fragments (waves 0,1; o = wave) ----")
    skip = a.label("nowt")
    a(f"""s_cmp_ge_u32 s{S_WAVE}, 2
    s_cbranch_scc1 {skip}
    v_lshrrev_b32 v2, 4, v1
    v_bfe_u32 v3, v1, 2, 1
    v_bfe_u32 v4, v1, 3, 1
    v_lshl_add_u32 v3, v4, 2, v3
    v_lshlrev_b32 v3, 7, v3
    v_and_b32 v4, 3, v1
    v_lshl_add_u32 v3, v4, 3, v3
    s_lshl_b32 s{S_T0}, s{S_WAVE}, 1
    v_xor_b32 v5, s{S_T0}, v2
    v_lshl_add_u32 v3, v5, 5, v3
    s_lshl_b32 s{S_T0}, s{S_WAVE}, 10
    s_add_u32 s{S_T0}, s{S_T0}, {L_WOT}
    v_add_u32 v3, s{S_T0}, v3
    v_xor_b32 v5, 32, v3
    ds_read_b64_tr_b16 v[24:25], v3
    ds_read_b64_tr_b16 v[26:27], v5 offset:256
    v_lshrrev_b32 v2, 2, v1
    v_lshlrev_b32 v2, 4, v2
    v_lshl_add_u32 v2, v4, 11, v2
    s_lshr_b32 s{S_T0}, s{S_RB}, 2
    s_lshl_b32 s{S_T0}, s{S_T0}, 16
    s_lshl_b32 s{S_T1}, s{S_CB}, 13
    s_add_u32 s{S_T0}, s{S_T0}, s{S_T1}
    s_and_b32 s{S_T1}, s{S_RB}, 3
    s_lshl_b32 s{S_T1}, s{S_T1}, 9
    s_add_u32 s{S_T0}, s{S_T0}, s{S_T1}
    s_lshl_b32 s{S_T1}, s{S_WAVE}, 8
    s_add_u32 s{S_T0}, s{S_T0}, s{S_T1}
    s_add_u32 s{S_T0}, s{S_T0}, {WS_WT}
    s_waitcnt lgkmcnt(0)
    buffer_store_dwordx4 v[24:27], v2, {sr(R_WS,4)}, s{S_T0} offen {sc}
    {skip}:""")


G_ACC = 32
G_ACCK = 40
G_ACCV = 44
G_FR = 48
KV_WAVE = 7

def g_zero(a):
    for i in range(16):
        a(f"v_mov_b32 v{G_ACC+i}, 0")


def g_compute_slots(a, slots, kv):
    steps = [(s, ks) for s in slots for ks in range(2)]
    nrd = 4 + (3 if kv else 0)
    FS = 20
    def reads(i):
        s, ks = steps[i]
        F = G_FR + (i & 1) * FS
        so = (s & 3) * 16384
        a(f"""ds_read_b64_tr_b16 {vr(F,2)}, v19 offset:{so + ks*4096}
        ds_read_b64_tr_b16 {vr(F+2,2)}, v19 offset:{so + ks*4096 + 512}
        ds_read_b128 {vr(F+4,4)}, v{14+ks} offset:{so}
        ds_read_b128 {vr(F+8,4)}, v{14+ks} offset:{so + 2048}""")
        if kv:
            a(f"""ds_read_b64_tr_b16 {vr(F+12,2)}, v18 offset:{s*2048 + ks*1024}
            ds_read_b64_tr_b16 {vr(F+14,2)}, v18 offset:{s*2048 + ks*1024 + 128}
            ds_read_b128 {vr(F+16,4)}, v{16+ks} offset:{so}""")
    reads(0)
    for i in range(len(steps)):
        F = G_FR + (i & 1) * FS
        if i + 1 < len(steps):
            reads(i + 1)
            a(f"s_waitcnt lgkmcnt({nrd})")
        else:
            a("s_waitcnt lgkmcnt(0)")
        a(f"""v_mfma_f32_16x16x32_bf16 {vr(G_ACC,4)}, {vr(F,4)}, {vr(F+4,4)}, {vr(G_ACC,4)}
        v_mfma_f32_16x16x32_bf16 {vr(G_ACC+4,4)}, {vr(F,4)}, {vr(F+8,4)}, {vr(G_ACC+4,4)}""")
        if kv:
            a(f"""v_mfma_f32_16x16x32_bf16 {vr(G_ACCK,4)}, {vr(F+12,4)}, {vr(F+16,4)}, {vr(G_ACCK,4)}
            v_mfma_f32_16x16x32_bf16 {vr(G_ACCV,4)}, {vr(F+16,4)}, {vr(F+12,4)}, {vr(G_ACCV,4)}""")


def g_compute(a, slots):
    lk = a.label("gkv"); le = a.label("gend")
    a(f"""s_cmp_eq_u32 s{S_WAVE}, {KV_WAVE}
    s_cbranch_scc1 {lk}""")
    g_compute_slots(a, slots, False)
    a(f"s_branch {le}\n{lk}:")
    g_compute_slots(a, slots, True)
    a(f"{le}:")


def g_half_shift(a):
    for r in (14, 15, 16, 17, 19):
        a(f"v_add_u32 v{r}, 0x10000, v{r}")


def g_epilogue(a, sc):
    a.c("---- Q store ----")
    a(f"""v_bfe_u32 v2, v1, 3, 2
    v_lshlrev_b32 v2, 13, v2
    v_lshrrev_b32 v3, 5, v1
    v_lshl_add_u32 v2, v3, 9, v2
    v_and_b32 v3, 7, v1
    v_lshl_add_u32 v2, v3, 4, v2
    s_lshl_b32 s{S_T0}, s{S_RB}, 16
    s_lshr_b32 s{S_T1}, s{S_WAVE}, 2
    s_lshl_b32 s{S_T1}, s{S_T1}, 15
    s_add_u32 s{S_T0}, s{S_T0}, s{S_T1}
    s_lshl_b32 s{S_T1}, s{S_CB}, 10
    s_add_u32 s{S_T0}, s{S_T0}, s{S_T1}
    s_and_b32 s{S_T1}, s{S_WAVE}, 3
    s_lshl_b32 s{S_T1}, s{S_T1}, 7
    s_add_u32 s{S_T0}, s{S_T0}, s{S_T1}
    s_nop 3
    v_cvt_pk_bf16_f32 v20, v{G_ACC}, v{G_ACC+1}
    v_cvt_pk_bf16_f32 v21, v{G_ACC+2}, v{G_ACC+3}
    v_cvt_pk_bf16_f32 v22, v{G_ACC+4}, v{G_ACC+5}
    v_cvt_pk_bf16_f32 v23, v{G_ACC+6}, v{G_ACC+7}
    s_nop 1
    v_permlane16_swap_b32 v20, v22
    v_permlane16_swap_b32 v21, v23
    buffer_store_dwordx4 v[20:23], v2, {sr(R_WS,4)}, s{S_T0} offen {sc}""")
    le = a.label("kvend"); lv = a.label("isv")
    scale = 0.25 * math.log2(math.e)
    a(f"""s_cmp_lg_u32 s{S_WAVE}, {KV_WAVE}
    s_cbranch_scc1 {le}
    v_lshrrev_b32 v2, 5, v1
    v_lshlrev_b32 v2, 9, v2
    v_and_b32 v3, 15, v1
    v_lshl_add_u32 v2, v3, 4, v2
    v_bfe_u32 v3, v1, 4, 1
    v_lshl_add_u32 v2, v3, 3, v2
    s_lshr_b32 s{S_T0}, s{S_LIN}, 2
    s_lshl_b32 s{S_T0}, s{S_T0}, 11
    s_bfe_u32 s{S_T1}, s{S_CB}, 0x10001
    s_lshl_b32 s{S_T1}, s{S_T1}, 8
    s_add_u32 s{S_T0}, s{S_T0}, s{S_T1}
    s_add_u32 s{S_T0}, s{S_T0}, {WS_KV}
    s_bitcmp1_b32 s{S_CB}, 0
    s_cbranch_scc1 {lv}""")
    a.c("K tile: scale, store, norm max")
    for i in range(4):
        a(f"v_mul_f32 v{G_ACCK+i}, {f2u(scale):#x}, v{G_ACCK+i}")
    a(f"""v_cvt_pk_bf16_f32 v24, v{G_ACCK}, v{G_ACCK+1}
    v_cvt_pk_bf16_f32 v25, v{G_ACCK+2}, v{G_ACCK+3}
    buffer_store_dwordx2 v[24:25], v2, {sr(R_WS,4)}, s{S_T0} offen {sc}
    v_mul_f32 v4, v{G_ACCK}, v{G_ACCK}
    v_fmac_f32 v4, v{G_ACCK+1}, v{G_ACCK+1}
    v_fmac_f32 v4, v{G_ACCK+2}, v{G_ACCK+2}
    v_fmac_f32 v4, v{G_ACCK+3}, v{G_ACCK+3}
    v_mov_b32 v5, v4
    s_nop 1
    v_permlane32_swap_b32 v4, v5
    s_nop 1
    v_add_f32 v4, v4, v5
    v_mov_b32 v5, v4
    s_nop 1
    v_permlane16_swap_b32 v4, v5
    s_nop 1
    v_add_f32 v4, v4, v5
    s_nop 1
    v_max_f32_dpp v4, v4, v4 row_ror:8 row_mask:0xf bank_mask:0xf
    s_nop 1
    v_max_f32_dpp v4, v4, v4 row_ror:4 row_mask:0xf bank_mask:0xf
    s_nop 1
    v_max_f32_dpp v4, v4, v4 row_ror:2 row_mask:0xf bank_mask:0xf
    s_nop 1
    v_max_f32_dpp v4, v4, v4 row_ror:1 row_mask:0xf bank_mask:0xf
    s_lshl_b32 s{S_T0}, s{S_LIN}, 1
    s_add_u32 s{S_T0}, s{S_T0}, {WS_KN}
    v_mov_b32 v5, 0
    s_mov_b64 exec, 1
    buffer_store_dword v4, v5, {sr(R_WS,4)}, s{S_T0} offen {sc}
    s_mov_b64 exec, -1
    s_branch {le}
    {lv}:
    v_cvt_pk_bf16_f32 v24, v{G_ACCV}, v{G_ACCV+1}
    v_cvt_pk_bf16_f32 v25, v{G_ACCV+2}, v{G_ACCV+3}
    buffer_store_dwordx2 v[24:25], v2, {sr(R_WS,4)}, s{S_T0} offen offset:1024 {sc}
    {le}:""")


KGP = 96
KG = 104
KG_D = 92

def kg_issue_loads(a):
    a(f"""v_and_b32 v2, 255, v0
    v_lshlrev_b32 v2, 1, v2
    s_lshl_b32 s{S_T0}, s{S_LIN}, 9
    v_add_u32 v2, s{S_T0}, v2
    s_lshl_b32 s{S_T0}, s{S_LIN}, 2
    s_load_dword s{S_DT}, {sr(S_LDT,2)}, s{S_T0}
    s_load_dword s{S_DS}, {sr(S_DSK,2)}, s{S_T0}
    global_load_ushort v{KGP}, v2, {sr(S_ARE,2)}
    global_load_ushort v{KGP+1}, v2, {sr(S_AIM,2)}
    global_load_ushort v{KGP+2}, v2, {sr(S_BRE,2)}
    global_load_ushort v{KGP+3}, v2, {sr(S_BIM,2)}
    global_load_ushort v{KGP+4}, v2, {sr(S_CRE,2)}
    global_load_ushort v{KGP+5}, v2, {sr(S_CIM,2)}""")


def cmul(a, D, P, W, T):
    a(f"""v_pk_mul_f32 {vr(T,2)}, {vr(P,2)}, {vr(W,2)} op_sel:[0,0] op_sel_hi:[0,1]
    v_pk_fma_f32 {vr(D,2)}, {vr(P,2)}, {vr(W,2)}, {vr(T,2)} op_sel:[1,1,0] op_sel_hi:[1,0,1] neg_lo:[1,0,0]""")


def anchor(a, D, AL, BE, p, T):
    a(f"""v_mul_f32 v{T}, {f2u(float(p)):#x}, v{AL}
    v_mul_f32 v{T+1}, {f2u(float(p)):#x}, v{BE}
    v_exp_f32 v{T}, v{T}
    v_fract_f32 v{T+1}, v{T+1}
    v_cos_f32 v{D}, v{T+1}
    v_sin_f32 v{D+1}, v{T+1}
    s_nop 0
    v_pk_mul_f32 {vr(D,2)}, {vr(D,2)}, {vr(T,2)} op_sel:[0,0] op_sel_hi:[1,0]""")


def kg_valu(a, vm_wait):
    LOG2E = math.log2(math.e)
    L_hi = struct.unpack("<f", struct.pack("<f", LOG2E))[0]
    L_lo = LOG2E - L_hi
    AL, BE, DT = KG, KG + 1, KG + 2
    T = KG + 4
    a.c("---- K-gen VALU ----")
    a(f"""s_waitcnt lgkmcnt(0)
    s_bitcmp1_b32 s{S_WAVE}, 1
    s_cselect_b32 s{S_T0}, 0, 16
    s_lshl_b32 s{S_T0}, s{S_DT}, s{S_T0}
    s_and_b32 s{S_T0}, s{S_T0}, 0xffff0000
    s_mov_b32 s{S_K0}, {f2u(L_hi):#x}
    v_mov_b32 v{T}, s{S_T0}
    v_mul_f32 v{T+1}, s{S_K0}, v{T}
    v_fma_f32 v{T+2}, v{T}, s{S_K0}, -v{T+1}
    v_fmac_f32 v{T+2}, {f2u(L_lo):#x}, v{T}
    v_exp_f32 v{T+1}, v{T+1}
    v_mul_f32 v{T+2}, {f2u(math.log(2.0)):#x}, v{T+2}
    v_fma_f32 v{T+1}, v{T+1}, v{T+2}, v{T+1}
    v_cvt_pk_bf16_f32 v{T+1}, v{T+1}, v{T+1}
    v_lshlrev_b32 v{DT}, 16, v{T+1}""")
    a.c("LDS write address: region + ch*XY_CH + n*4")
    a(f"""v_and_b32 v2, 127, v0
    v_lshlrev_b32 v2, 2, v2
    s_lshr_b32 s{S_T0}, s{S_WAVE}, 1
    s_mul_i32 s{S_T0}, s{S_T0}, {XY_CH}
    s_add_u32 s{S_T0}, s{S_T0}, {L_XY}
    v_add_u32 v2, s{S_T0}, v2
    s_waitcnt vmcnt({vm_wait})""")
    for i in range(6):
        a(f"v_lshlrev_b32 v{KGP+i}, 16, v{KGP+i}")
    a(f"""v_mul_f32 v{AL}, v{DT}, v{KGP}
    v_mul_f32 v{BE}, v{DT}, v{KGP+1}
    v_mul_f32 v{AL}, s{S_K0}, v{AL}
    v_mul_f32 v{BE}, 0.15915494, v{BE}""")
    ly = a.label("kgy"); le = a.label("kge")
    a(f"""s_cmp_ge_u32 s{S_WAVE}, 4
    s_cbranch_scc1 {ly}""")
    Z, W = KG + 8, KG + 10
    P = KG + 12
    T2 = KG + 30
    O = KG + 40
    cnt = [0]
    def put(src, slots):
        o = O + (cnt[0] & 7); cnt[0] += 1
        a(f"v_cvt_pk_bf16_f32 v{o}, v{src}, v{src+1}")
        for s in slots:
            a(f"ds_write_b32 v2, v{o} offset:{s*XY_ROW}")
    anchor(a, Z, AL, BE, 1, T)
    anchor(a, W, AL, BE, 256, T + 2)
    a.c("c = C * (dt*B)")
    a(f"v_pk_mul_f32 {vr(KGP+2,2)}, {vr(KGP+2,2)}, {vr(DT,2)} op_sel:[0,0] op_sel_hi:[1,0]")
    cmul(a, P, KGP + 4, KGP + 2, T2)
    put(P, [0])
    for e in range(1, 9):
        cmul(a, P + 2*e, P + 2*(e-1), Z, T2 + 2*(e & 3))
        if e < 8:
            put(P + 2*e, [e])
    slot1 = {0: [8], 2: [9], 4: [10, 12], 6: [13], 8: [14]}
    k = 0
    for e in (0, 2, 4, 6, 8):
        cmul(a, P + 2*e, P + 2*e, W, T2 + 2*(k & 3)); k += 1
    for e in (0, 2, 4, 6, 8):
        put(P + 2*e, slot1[e])
    for aa in (2, 3):
        for e in (0, 4, 8):
            cmul(a, P + 2*e, P + 2*e, W, T2 + 2*(k & 3)); k += 1
        for j, e in enumerate((0, 4, 8)):
            put(P + 2*e, [16 + 4*(aa-2) + j])
    for aa in (4, 5, 6, 7):
        for e in (0, 8):
            cmul(a, P + 2*e, P + 2*e, W, T2 + 2*(k & 3)); k += 1
        for j, e in enumerate((0, 8)):
            put(P + 2*e, [24 + 2*(aa-4) + j])
    a(f"s_branch {le}\n{ly}:")
    a(f"v_sub_f32 v{BE}, 0, v{BE}")
    Z8, Z32 = KG + 8, KG + 10
    anchor(a, Z8, AL, BE, 8, T)
    anchor(a, Z32, AL, BE, 32, T + 2)
    a(f"""v_mov_b32 v{O}, 0x3f80
    ds_write_b32 v2, v{O}""")
    cnt[0] = 1
    C = [P, Z8, P + 2, P + 4]
    cmul(a, C[2], Z8, Z8, T2)
    put(Z8, [1])
    cmul(a, C[3], C[2], Z8, T2 + 2)
    put(C[2], [2])
    put(C[3], [3])
    put(Z32, [4])
    k = 0
    for m in range(1, 8):
        for j in range(4):
            if j == 0:
                if m == 1:
                    continue
                src = Z32 if m == 2 else C[0]
                cmul(a, C[0], src, Z32, T2 + 2*(k & 3)); k += 1
            else:
                cmul(a, C[j], C[j], Z32, T2 + 2*(k & 3)); k += 1
        for j in range(4):
            if j == 0 and m == 1:
                continue
            put(C[j], [4*m + j])
    a(f"{le}:")


def kg_mfma(a):
    F = KG
    a.c("---- K-gen MFMA ----")
    a(f"""v_and_b32 v2, 15, v1
    v_mul_u32_u24 v2, {XY_ROW}, v2
    v_and_b32 v3, 48, v1
    v_add_u32 v2, v2, v3
    s_lshr_b32 s{S_T0}, s{S_WAVE}, 1
    s_mul_i32 s{S_T0}, s{S_T0}, {16*XY_ROW}
    s_add_u32 s{S_T0}, s{S_T0}, {L_X}
    v_add_u32 v3, s{S_T0}, v2
    s_lshr_b32 s{S_T0}, s{S_WAVE}, 2
    s_lshl_b32 s{S_T0}, s{S_T0}, 1
    s_and_b32 s{S_T1}, s{S_WAVE}, 1
    s_add_u32 s{S_T0}, s{S_T0}, s{S_T1}
    s_mul_i32 s{S_T0}, s{S_T0}, {16*XY_ROW}
    s_add_u32 s{S_T0}, s{S_T0}, {L_Y}
    v_add_u32 v4, s{S_T0}, v2""")
    for ks in range(7):
        a(f"""ds_read_b128 {vr(F+8*ks,4)}, v3 offset:{64*ks}
        ds_read_b128 {vr(F+8*ks+4,4)}, v4 offset:{64*ks}""")
    for ks in range(8):
        if ks == 0:
            a("s_waitcnt lgkmcnt(12)")
            a(f"v_mfma_f32_16x16x32_bf16 {vr(KG_D,4)}, {vr(F,4)}, {vr(F+4,4)}, 0")
            a(f"""ds_read_b128 {vr(F+56,4)}, v3 offset:{64*7}
            ds_read_b128 {vr(F+60,4)}, v4 offset:{64*7}""")
        else:
            a(f"s_waitcnt lgkmcnt({14 - 2*ks})")
            a(f"v_mfma_f32_16x16x32_bf16 {vr(KG_D,4)}, {vr(F+8*ks,4)}, {vr(F+8*ks+4,4)}, {vr(KG_D,4)}")


def SEL(lo, hi):
    return (2*lo) | ((2*lo+1) << 8) | ((2*hi) << 16) | ((2*hi+1) << 24)


def kg_copy0(a):
    a.c("---- K copy0 + zero fill ----")
    a(f"""v_cvt_pk_bf16_f32 v20, v{KG_D}, v{KG_D+1}
    v_cvt_pk_bf16_f32 v21, v{KG_D+2}, v{KG_D+3}
    v_mov_b32 v24, 0
    v_mov_b32 v25, 0
    v_mov_b32 v26, 0
    v_mov_b32 v27, 0""")
    a.c("zero u rows: 2 x 2560B -> threads 0..319 ; K tails: 8 x 64B -> threads 320..351")
    a(f"""v_lshlrev_b32 v2, 4, v0
    v_cmp_le_u32 vcc, 160, v0
    v_mov_b32 v3, {96*80 - 2560}
    s_nop 0
    v_cndmask_b32 v3, 0, v3, vcc
    v_add3_u32 v2, v2, v3, 0
    v_add_u32 v2, {L_UR}, v2
    v_subrev_u32 v4, 320, v0
    v_lshrrev_b32 v5, 2, v4
    v_mul_u32_u24 v5, {KC_COPY}, v5
    v_and_b32 v4, 3, v4
    v_lshl_add_u32 v5, v4, 4, v5
    v_add_u32 v5, {L_KC + 4096}, v5
    v_cmp_le_u32 vcc, 320, v0
    s_nop 1
    v_cndmask_b32 v2, v2, v5, vcc
    v_cmp_gt_u32 vcc, 352, v0
    s_and_saveexec_b64 {sr(S_SAVE,2)}, vcc
    ds_write_b128 v2, v[24:27]
    s_mov_b64 exec, {sr(S_SAVE,2)}""")
    a.c("lo = 16 ct + (lane&15); base addr = L_KC + ch*KC_CH - 16 lo")
    a(f"""v_and_b32 v2, 15, v1
    v_lshlrev_b32 v2, 4, v2
    s_lshr_b32 s{S_T0}, s{S_WAVE}, 2
    s_mul_i32 s{S_T0}, s{S_T0}, {KC_CH}
    s_and_b32 s{S_T1}, s{S_WAVE}, 1
    s_lshl_b32 s{S_T1}, s{S_T1}, 8
    s_sub_u32 s{S_T0}, s{S_T0}, s{S_T1}
    s_add_u32 s{S_T0}, s{S_T0}, {L_KC}
    v_sub_u32 v2, s{S_T0}, v2
    v_lshrrev_b32 v3, 5, v1
    v_bfe_u32 v4, v1, 4, 1
    v_cmp_le_u32 vcc, 32, v1""")
    l1 = a.label("rt1"); le = a.label("c0e")
    a(f"""s_bitcmp1_b32 s{S_WAVE}, 1
    s_cbranch_scc1 {l1}""")
    a.c("rt = 0 : addr += 2*2044 - 512*(g>>1) - 8*(g&1)")
    a(f"""v_lshlrev_b32 v3, 9, v3
    v_lshl_add_u32 v3, v4, 3, v3
    v_sub_u32 v2, v2, v3
    v_mov_b32 v5, {SEL(3,2):#x}
    v_mov_b32 v6, {SEL(2,1):#x}
    v_cndmask_b32 v5, v5, v6, vcc
    v_mov_b32 v6, {SEL(1,0):#x}
    v_mov_b32 v7, {SEL(0,0):#x}
    v_cndmask_b32 v6, v6, v7, vcc
    v_perm_b32 v22, v21, v20, v5
    v_perm_b32 v23, v21, v20, v6
    ds_write_b64 v2, v[22:23] offset:{2*2044}
    s_branch {le}
    {l1}:""")
    a.c("rt = 1 : B = 512+256 g (g<2) ; 1024+512(g-2) (g>=2) ; addr += 2*(2040 - B)")
    a(f"""v_lshlrev_b32 v4, 9, v4
    v_add_u32 v4, 1024, v4
    v_lshlrev_b32 v4, v3, v4
    v_sub_u32 v2, v2, v4
    v_mov_b32 v5, {SEL(2,2):#x}
    v_mov_b32 v6, {SEL(1,1):#x}
    v_cndmask_b32 v5, v5, v6, vcc
    v_and_b32 v7, 1, v1
    v_mul_u32_u24 v7, 0x202, v7
    v_lshlrev_b32 v7, 16, v7
    v_add_u32 v7, {SEL(1,0):#x}, v7
    v_cndmask_b32 v6, v6, v7, vcc
    v_mov_b32 v8, {SEL(1,0):#x}
    v_mov_b32 v9, {SEL(0,0):#x}
    v_cndmask_b32 v8, v8, v9, vcc
    v_perm_b32 v24, v21, v20, v5
    v_perm_b32 v25, v21, v20, v6
    v_perm_b32 v26, v21, v20, v8
    v_perm_b32 v27, v21, v20, v9
    ds_write_b128 v2, v[24:27] offset:{2*2040}
    v_perm_b32 v28, v20, v21, v5
    v_perm_b32 v29, v20, v21, v6
    v_perm_b32 v30, v20, v21, v8
    v_perm_b32 v31, v20, v21, v9
    s_mov_b64 exec, vcc
    ds_write_b128 v2, v[28:31] offset:{2*2040 - 512}
    s_mov_b64 exec, -1
    {le}:""")


def kg_expand(a):
    a.c("---- T4 expansion ----")
    a(f"""v_and_b32 v2, 255, v0
    v_lshlrev_b32 v2, 4, v2
    s_lshr_b32 s{S_T0}, s{S_WAVE}, 2
    s_mul_i32 s{S_T0}, s{S_T0}, {KC_CH}
    s_add_u32 s{S_T0}, s{S_T0}, {L_KC}
    v_add_u32 v2, s{S_T0}, v2
    ds_read_b128 v[20:23], v2
    ds_read_b64 v[24:25], v2 offset:16
    s_waitcnt lgkmcnt(0)""")
    for k in range(4):
        a(f"v_alignbit_b32 v{28+k}, v{21+k}, v{20+k}, 16")
    a(f"ds_write_b128 v2, v[28:31] offset:{KC_COPY}")
    for k in range(4):
        a(f"v_mov_b32 v{32+k}, v{21+k}")
    a(f"ds_write_b128 v2, v[32:35] offset:{2*KC_COPY}")
    for k in range(4):
        a(f"v_alignbit_b32 v{36+k}, v{22+k}, v{21+k}, 16")
    a(f"ds_write_b128 v2, v[36:39] offset:{3*KC_COPY}")


UR_LD = 40

def cv_issue_u(a, sc):
    a(f"""v_lshlrev_b32 v2, 4, v0
    s_lshl_b32 s{S_T0}, s{S_LIN}, 13
    s_add_u32 s{S_T0}, s{S_T0}, {WS_UT}
    buffer_load_dwordx4 {vr(UR_LD,4)}, v2, {sr(R_WS,4)}, s{S_T0} offen {sc}""")


def cv_write_u(a):
    a(f"""v_lshrrev_b32 v2, 2, v0
    v_lshrrev_b32 v3, 8, v0
    v_lshl_add_u32 v2, v3, 5, v2
    v_mul_u32_u24 v2, 80, v2
    v_and_b32 v3, 3, v0
    v_lshl_add_u32 v2, v3, 4, v2
    v_add_u32 v2, {L_UR + 32*80}, v2
    ds_write_b128 v2, {vr(UR_LD,4)}""")


CV_ACC = 48
CV_FR = 80

def cv_main(a):
    le = a.label("cvend"); lp = a.label("cvloop")
    a.c("---- conv ----")
    a(f"""s_cmp_ge_u32 s{S_WAVE}, 4
    s_cbranch_scc1 {le}
    v_and_b32 v2, 31, v1
    v_lshrrev_b32 v3, 5, v1
    v_mul_u32_u24 v4, 80, v2
    v_lshl_add_u32 v4, v3, 4, v4
    s_lshr_b32 s{S_T0}, s{S_WAVE}, 1
    s_and_b32 s{S_T1}, s{S_WAVE}, 1
    s_lshl_b32 s{S_T1}, s{S_T1}, 5
    s_mul_i32 s{S_T2}, s{S_T0}, {96*80}
    s_add_u32 s{S_T2}, s{S_T2}, s{S_T1}
    s_add_u32 s{S_T2}, s{S_T2}, {L_UR + 80}
    v_add_u32 v4, s{S_T2}, v4
    v_and_b32 v5, 3, v2
    v_xor_b32 v5, 3, v5
    v_mul_u32_u24 v5, {KC_COPY}, v5
    v_lshl_add_u32 v5, v3, 4, v5
    v_lshrrev_b32 v6, 2, v2
    v_lshlrev_b32 v6, 3, v6
    v_sub_u32 v5, v5, v6
    s_mul_i32 s{S_T2}, s{S_T0}, {KC_CH}
    s_add_u32 s{S_T2}, s{S_T2}, s{S_T1}
    s_add_u32 s{S_T2}, s{S_T2}, {L_KC + 2*2044 - 64*31 - 2048}
    v_add_u32 v5, s{S_T2}, v5""")
    for i in range(0, 32, 2):
        a(f"v_mov_b64 {vr(CV_ACC+i,2)}, 0")
    def reads(st, j):
        F = CV_FR + 16*st
        a(f"""ds_read_b64 {vr(F,2)}, v5 offset:{64*j + 2048}
        ds_read_b64 {vr(F+2,2)}, v5 offset:{64*j + 2048 + 8}
        ds_read_b128 {vr(F+8,4)}, v4 offset:{80*j}
        ds_read_b128 {vr(F+12,4)}, v4 offset:{80*j + 2560}
        ds_read_b64 {vr(F+4,2)}, v5 offset:{64*j}
        ds_read_b64 {vr(F+6,2)}, v5 offset:{64*j + 8}""")
    reads(0, 0)
    a(f"s_mov_b32 s{S_CNT}, 8\n{lp}:")
    for j in range(4):
        F = CV_FR + 16*(j & 1)
        reads((j + 1) & 1, j + 1)
        a(f"""s_waitcnt lgkmcnt(6)
        v_mfma_f32_32x32x16_bf16 {vr(CV_ACC,16)}, {vr(F,4)}, {vr(F+8,4)}, {vr(CV_ACC,16)}
        v_mfma_f32_32x32x16_bf16 {vr(CV_ACC+16,16)}, {vr(F,4)}, {vr(F+12,4)}, {vr(CV_ACC+16,16)}
        v_mfma_f32_32x32x16_bf16 {vr(CV_ACC+16,16)}, {vr(F+4,4)}, {vr(F+8,4)}, {vr(CV_ACC+16,16)}""")
    a(f"""v_add_u32 v4, 320, v4
    v_add_u32 v5, 256, v5
    s_sub_u32 s{S_CNT}, s{S_CNT}, 1
    s_cmp_lg_u32 s{S_CNT}, 0
    s_cbranch_scc1 {lp}""")
    a.c("partials -> PB[wave][I][q][lane]")
    a(f"""s_lshl_b32 s{S_T0}, s{S_WAVE}, 13
    s_add_u32 s{S_T0}, s{S_T0}, {L_PB}
    v_lshlrev_b32 v2, 4, v1
    v_add_u32 v2, s{S_T0}, v2
    s_nop 7
    s_waitcnt lgkmcnt(0)""")
    for q in range(8):
        a(f"ds_write_b128 v2, {vr(CV_ACC+4*q,4)} offset:{1024*q}")
    a(f"{le}:")


def cv_epilogue(a):
    a.c("---- conv epilogue ----")
    a(f"""v_lshlrev_b32 v2, 4, v0
    v_add_u32 v2, {L_PB}, v2
    ds_read_b128 v[20:23], v2
    ds_read_b128 v[24:27], v2 offset:8192
    ds_read_b128 v[28:31], v2 offset:16384
    ds_read_b128 v[32:35], v2 offset:24576
    v_and_b32 v3, 31, v1
    v_lshrrev_b32 v4, 5, v1
    v_mul_u32_u24 v5, 80, v3
    v_lshl_add_u32 v5, v4, 3, v5
    s_lshr_b32 s{S_T0}, s{S_WAVE}, 2
    s_and_b32 s{S_T1}, s{S_WAVE}, 3
    s_mul_i32 s{S_T2}, s{S_T0}, {32*80}
    s_lshl_b32 s{S_T3}, s{S_T1}, 4
    s_add_u32 s{S_T2}, s{S_T2}, s{S_T3}
    s_add_u32 s{S_T2}, s{S_T2}, {L_UR + 32*80}
    v_add_u32 v5, s{S_T2}, v5
    ds_read_b64 v[36:37], v5
    ds_read_b64 v[38:39], v5 offset:{96*80}
    v_lshlrev_b32 v3, 16, v3
    v_lshl_add_u32 v3, v4, 13, v3
    s_lshl_b32 s{S_T0}, s{S_T0}, 21
    s_lshl_b32 s{S_T1}, s{S_T1}, 14
    s_add_u32 s{S_T0}, s{S_T0}, s{S_T1}
    s_lshl_b32 s{S_T1}, s{S_LIN}, 2
    s_add_u32 s{S_T0}, s{S_T0}, s{S_T1}
    s_add_u32 s{S_T1}, s{S_T0}, 4096
    s_lshl_b32 s{S_K0}, s{S_DS}, 16
    s_and_b32 s{S_K1}, s{S_DS}, 0xffff0000
    s_waitcnt lgkmcnt(2)
    v_pk_add_f32 v[20:21], v[20:21], v[24:25]
    v_pk_add_f32 v[22:23], v[22:23], v[26:27]
    v_pk_add_f32 v[28:29], v[28:29], v[32:33]
    v_pk_add_f32 v[30:31], v[30:31], v[34:35]
    s_waitcnt lgkmcnt(0)""")
    for c, (U, Y, K) in enumerate(((36, 20, S_K0), (38, 28, S_K1))):
        a(f"""v_lshlrev_b32 v24, 16, v{U}
        v_and_b32 v25, 0xffff0000, v{U}
        v_lshlrev_b32 v26, 16, v{U+1}
        v_and_b32 v27, 0xffff0000, v{U+1}
        v_fmac_f32 v{Y}, s{K}, v24
        v_fmac_f32 v{Y+1}, s{K}, v25
        v_fmac_f32 v{Y+2}, s{K}, v26
        v_fmac_f32 v{Y+3}, s{K}, v27""")
    for e in range(4):
        a(f"v_cvt_pk_bf16_f32 v{32+e}, v{20+e}, v{28+e}")
    a(f"""buffer_store_dword v32, v3, {sr(R_OUT,4)}, s{S_T0} offen
    buffer_store_dword v33, v3, {sr(R_OUT,4)}, s{S_T0} offen offset:2048
    buffer_store_dword v34, v3, {sr(R_OUT,4)}, s{S_T1} offen
    buffer_store_dword v35, v3, {sr(R_OUT,4)}, s{S_T1} offen offset:2048""")


A_S0, A_S1, A_O, A_C = 16, 32, 48, 64
A_K = 80
A_AF = 84
A_V0, A_V1 = 88, 96
A_Q, A_Q1 = 104, 108
A_ACC = 112
A_W = 128
A_IDX, A_IDX2, A_ADDR, A_L16 = 12, 13, 14, 15
A_KM = 11
BOUND_T = 32.0

def at_issue_kv(a, steps, sc):
    assert steps[0] % 2 == 0 and len(steps) % 2 == 0
    a(f"""s_lshr_b32 s{S_T0}, s{S_WAVE}, 2
    s_lshl_b32 s{S_T0}, s{S_T0}, 11
    s_bfe_u32 s{S_T1}, s{S_WAVE}, 0x10001
    s_lshl_b32 s{S_T1}, s{S_T1}, 16
    s_add_u32 s{S_T0}, s{S_T0}, s{S_T1}
    s_and_b32 s{S_T1}, s{S_WAVE}, 1
    s_lshl_b32 s{S_T1}, s{S_T1}, 10
    s_add_u32 s{S_T0}, s{S_T0}, s{S_T1}
    s_add_u32 s{S_T0}, s{S_T0}, {WS_KV + steps[0]*2048}
    s_lshl_b32 s{S_T1}, s{S_WAVE}, 10
    s_add_u32 s{S_T1}, s{S_T1}, {L_KV + steps[0]*4096}""")
    for j in range(len(steps) // 2):
        a(f"""s_mov_b32 m0, s{S_T1}
        s_add_u32 s{S_T1}, s{S_T1}, 8192
        buffer_load_dwordx4 v{A_L16}, {sr(R_WS,4)}, s{S_T0} offen {sc} lds
        s_add_u32 s{S_T0}, s{S_T0}, 4096""")


def at_issue_q(a, sc):
    a(f"""s_lshl_b32 s{S_T0}, s{S_LIN}, 13
    s_and_b32 s{S_T1}, s{S_WAVE}, 3
    s_lshl_b32 s{S_T1}, s{S_T1}, 10
    s_add_u32 s{S_T0}, s{S_T0}, s{S_T1}
    s_add_u32 s{S_T1}, s{S_T0}, 4096
    buffer_load_dwordx4 {vr(A_Q,4)}, v{A_L16}, {sr(R_WS,4)}, s{S_T0} offen {sc}
    buffer_load_dwordx4 {vr(A_Q1,4)}, v{A_L16}, {sr(R_WS,4)}, s{S_T1} offen {sc}
    v_lshlrev_b32 v2, 3, v1
    s_mov_b32 s{S_T0}, {WS_KN}
    buffer_load_dwordx2 v[10:11], v2, {sr(R_WS,4)}, s{S_T0} offen {sc}""")


def at_issue_w(a, rnd_sgpr_off, sc):
    a(f"""s_lshl_b32 s{S_T0}, s{S_WAVE}, 13
    s_add_u32 s{S_T0}, s{S_T0}, {WS_WT + rnd_sgpr_off}""")
    for t4 in range(4):
        for half in range(2):
            for j in range(4):
                r = A_W + t4*32 + half*16 + j*4
                a(f"buffer_load_dwordx4 {vr(r,4)}, v{A_L16}, {sr(R_WS,4)}, s{S_T0} offen offset:{1024*j} {sc}")
            a(f"s_add_u32 s{S_T0}, s{S_T0}, {4096 if half == 0 else 65536 - 4096}")


def at_consts(a):
    a(f"""v_mov_b32 v{A_IDX}, 0xdddddddd
    v_and_b32 v2, 1, v1
    v_mul_u32_u24 v2, 0xaaaa, v2
    v_add_u32 v{A_IDX2}, 0x4444, v2
    s_mov_b32 s{S_VMASK}, 0xffff
    s_mov_b32 s{S_VMASK+1}, 0xffff
    s_lshr_b32 s{S_KAP}, s{S_WAVE}, 2
    v_and_b32 v2, 27, v1
    v_cmp_eq_u32 vcc, 16, v2
    v_mov_b32 v3, 0x3f803f80
    s_nop 0
    v_cndmask_b32 v2, 0, v3, vcc
    v_mov_b32 v3, v2""")
    for i in range(0, 16, 2):
        a(f"v_mov_b64 {vr(A_V0+i,2)}, v[2:3]")
    for i in range(0, 16, 2):
        a(f"v_mov_b64 {vr(A_ACC+i,2)}, 0")


def at_kmax(a):
    a(f"""v_max_f32 v11, v10, v11
    s_nop 1
    v_max_f32_dpp v11, v11, v11 row_ror:8 row_mask:0xf bank_mask:0xf
    s_nop 1
    v_max_f32_dpp v11, v11, v11 row_ror:4 row_mask:0xf bank_mask:0xf
    s_nop 1
    v_max_f32_dpp v11, v11, v11 row_ror:2 row_mask:0xf bank_mask:0xf
    s_nop 1
    v_max_f32_dpp v11, v11, v11 row_ror:1 row_mask:0xf bank_mask:0xf
    v_mov_b32 v10, v11
    s_nop 1
    v_permlane16_swap_b32 v10, v11
    s_nop 1
    v_max_f32 v11, v10, v11
    v_mov_b32 v10, v11
    s_nop 1
    v_permlane32_swap_b32 v10, v11
    s_nop 1
    v_max_f32 v11, v10, v11""")


def at_round_start(a, sc):
    slow = a.label("slow"); go = a.label("go"); lp = a.label("mxl")
    a.c("---- round start ----")
    a(f"""s_lshl_b32 s{S_T0}, s{S_KAP}, 11
    v_add_u32 v{A_ADDR}, s{S_T0}, v{A_L16}
    ds_read_b128 {vr(A_K,4)}, v{A_ADDR}
    s_mov_b64 exec, {sr(S_VMASK,2)}
    ds_read_b128 {vr(A_V0,4)}, v{A_ADDR} offset:1024
    ds_read_b128 {vr(A_V0+4,4)}, v{A_ADDR} offset:1280
    s_mov_b64 exec, -1
    v_dot2_f32_bf16 v2, v{A_Q}, v{A_Q}, 0
    v_dot2_f32_bf16 v2, v{A_Q+1}, v{A_Q+1}, v2
    v_dot2_f32_bf16 v2, v{A_Q+2}, v{A_Q+2}, v2
    v_dot2_f32_bf16 v2, v{A_Q+3}, v{A_Q+3}, v2
    s_nop 2
    v_mov_b32 v3, v2
    s_nop 1
    v_permlane32_swap_b32 v2, v3
    s_nop 1
    v_add_f32 v2, v2, v3
    v_mul_f32 v2, v2, v{A_KM}
    v_sqrt_f32 v2, v2
    s_nop 0
    v_mul_f32 v2, {f2u(-1.02):#x}, v2
    v_cmp_le_f32 vcc, {f2u(-BOUND_T):#x}, v2
    s_cmp_eq_u64 vcc, exec
    s_cbranch_scc0 {slow}
    {go}:
    v_mov_b32 v3, v2""")
    for i in range(0, 16, 2):
        a(f"v_mov_b64 {vr(A_C+i,2)}, v[2:3]")
    a(f"""s_nop 0
    s_waitcnt lgkmcnt(2)
    v_mfma_f32_32x32x16_bf16 {vr(A_S0,16)}, {vr(A_K,4)}, {vr(A_Q,4)}, {vr(A_C,16)}
    ds_read_b128 {vr(A_K,4)}, v{A_ADDR} offset:4096""")
    for i in range(0, 10, 2):
        a(f"v_mov_b64 {vr(A_O+i,2)}, 0")
    a(f"""s_nop 6
    v_exp_f32 v{A_S0}, v{A_S0}
    v_exp_f32 v{A_S0+1}, v{A_S0+1}""")
    def emit_slow(a2):
        a2(f"""{slow}:
        s_mov_b32 s{S_T0}, {WS_KV}
        s_mov_b32 s{S_CNT}, 64
        v_mov_b32 v2, 0xff800000
        {lp}:
        buffer_load_dwordx4 v[4:7], v{A_L16}, {sr(R_WS,4)}, s{S_T0} offen {sc}
        s_add_u32 s{S_T0}, s{S_T0}, 2048
        s_waitcnt vmcnt(0)
        v_mfma_f32_32x32x16_bf16 {vr(A_S0,16)}, v[4:7], {vr(A_Q,4)}, 0
        s_nop 15""")
        for i in range(0, 16, 2):
            a2(f"v_max3_f32 v2, v2, v{A_S0+i}, v{A_S0+i+1}")
        a2(f"""s_sub_u32 s{S_CNT}, s{S_CNT}, 1
        s_cmp_lg_u32 s{S_CNT}, 0
        s_cbranch_scc1 {lp}
        v_mov_b32 v3, v2
        s_nop 1
        v_permlane32_swap_b32 v2, v3
        s_nop 1
        v_max_f32 v2, v2, v3
        v_sub_f32 v2, 0, v2
        s_branch {go}""")
    return emit_slow


PRIO_LO, PRIO_HI = 0, 5

def at_loop(a, label):
    a(f".p2align 6\n{label}:")
    for j in range(4):
        S, Sn = (A_S0, A_S1) if j % 2 == 0 else (A_S1, A_S0)
        Vc, Vn = (A_V0, A_V1) if j % 2 == 0 else (A_V1, A_V0)
        def E(R, i):
            if i == PRIO_LO: a("s_setprio 0")
            if i == PRIO_HI: a("s_setprio 1")
            a(f"v_exp_f32 v{R+i}, v{R+i}")
        a(f"""s_mov_b64 exec, {sr(S_VMASK,2)}
        ds_read_b128 {vr(Vn,4)}, v{A_ADDR} offset:{4096*(j+1) + 1024}
        ds_read_b128 {vr(Vn+4,4)}, v{A_ADDR} offset:{4096*(j+1) + 1280}
        s_mov_b64 exec, -1""")
        for i in range(2, 5): E(S, i)
        a(f"""s_waitcnt lgkmcnt(2)
        v_mfma_f32_32x32x16_bf16 {vr(Sn,16)}, {vr(A_K,4)}, {vr(A_Q,4)}, {vr(A_C,16)}
        ds_read_b128 {vr(A_K,4)}, v{A_ADDR} offset:{4096*(j+2)}""")
        for i in range(5, 11): E(S, i)
        a(f"v_smfmac_f32_32x32x32_bf16 {vr(A_O,16)}, {vr(Vc,4)}, {vr(S,8)}, v{A_IDX}")
        if j == 3:
            a(f"""v_add_u32 v{A_ADDR}, 0x4000, v{A_ADDR}
            s_sub_u32 s{S_CNT}, s{S_CNT}, 1""")
        for i in range(11, 16): E(S, i)
        if j == 3:
            a(f"s_cmp_lg_u32 s{S_CNT}, 0")
        for i in range(0, 2): E(Sn, i)
        a(f"v_smfmac_f32_32x32x32_bf16 {vr(A_O,16)}, {vr(Vc+4,4)}, {vr(S+8,8)}, v{A_IDX}")
    a(f"""s_cbranch_scc1 {label}
    s_setpc_b64 {sr(S_RET,2)}""")


def at_call(a, label, n):
    a(f"""s_mov_b32 s{S_CNT}, {n}
    s_call_b64 {sr(S_RET,2)}, {label}""")


def at_flush(a):
    a(f"""s_mul_i32 s{S_T0}, s{S_WAVE}, 2304
    s_add_u32 s{S_T0}, s{S_T0}, {L_XB}
    v_add_u32 v2, s{S_T0}, v{A_L16}
    v_lshlrev_b32 v3, 2, v1
    v_add_u32 v3, s{S_T0}, v3
    s_nop 7
    s_waitcnt lgkmcnt(0)
    ds_write_b128 v2, {vr(A_O,4)}
    ds_write_b128 v2, {vr(A_O+4,4)} offset:1024
    ds_write_b32 v3, v{A_O+8} offset:2048""")


def at_finish(a, rnd, inflight):
    a(f"""s_and_b32 s{S_T0}, s{S_WAVE}, 3
    s_mul_i32 s{S_T1}, s{S_T0}, 2304
    s_add_u32 s{S_T1}, s{S_T1}, {L_XB}
    s_lshl_b32 s{S_T2}, s{S_KAP}, 10
    s_add_u32 s{S_T2}, s{S_T2}, s{S_T1}
    v_add_u32 v2, s{S_T2}, v{A_L16}
    v_lshlrev_b32 v3, 2, v1
    v_add_u32 v3, s{S_T1}, v3
    ds_read_b32 v8, v3 offset:2048
    ds_read_b32 v9, v3 offset:{2048 + 4*2304}
    ds_read_b128 v[4:7], v2
    ds_read_b128 {vr(A_AF,4)}, v2 offset:{4*2304}
    v_and_b32 v2, 31, v1
    v_lshlrev_b32 v2, 5, v2
    v_lshrrev_b32 v3, 5, v1
    v_lshl_add_u32 v2, v3, 4, v2
    s_lshl_b32 s{S_T0}, s{S_T0}, 10
    s_lshl_b32 s{S_T1}, s{S_KAP}, 3
    s_add_u32 s{S_T0}, s{S_T0}, s{S_T1}
    s_add_u32 s{S_T0}, s{S_T0}, {L_OA + rnd*4096}
    v_add_u32 v2, s{S_T0}, v2
    s_waitcnt lgkmcnt(2)
    v_add_f32 v8, v8, v9
    v_rcp_f32 v8, v8
    s_waitcnt lgkmcnt(0)
    v_pk_add_f32 v[4:5], v[4:5], {vr(A_AF,2)}
    v_pk_add_f32 v[6:7], v[6:7], {vr(A_AF+2,2)}
    v_pk_mul_f32 v[4:5], v[4:5], v[8:9] op_sel_hi:[1,0]
    v_pk_mul_f32 v[6:7], v[6:7], v[8:9] op_sel_hi:[1,0]
    v_cvt_pk_bf16_f32 v4, v4, v5
    v_cvt_pk_bf16_f32 v5, v6, v7
    ds_write_b64 v2, v[4:5]""")


def at_proj(a, rnd):
    a(f"""v_add_u32 v2, {L_OA + rnd*4096}, v{A_L16}
    ds_read_b128 {vr(A_AF,4)}, v2
    ds_read_b128 v[4:7], v2 offset:1024""")
    for t4 in range(4):
        F = A_AF if t4 % 2 == 0 else 4
        a(f"s_waitcnt lgkmcnt({1 if t4 < 3 else 0})")
        for ct in range(4):
            a(f"v_smfmac_f32_16x16x64_bf16 {vr(A_ACC+4*ct,4)}, {vr(F,4)}, {vr(A_W + t4*32 + ct*8, 8)}, v{A_IDX2}")
        if t4 + 2 < 4:
            a(f"ds_read_b128 {vr(F,4)}, v2 offset:{1024*(t4+2)}")


def at_store(a):
    a(f"""v_lshrrev_b32 v2, 4, v1
    v_lshlrev_b32 v2, 12, v2
    v_and_b32 v3, 15, v1
    v_lshl_add_u32 v2, v3, 3, v2
    s_lshl_b32 s{S_T0}, s{S_LIN}, 14
    s_lshl_b32 s{S_T1}, s{S_WAVE}, 7
    s_add_u32 s{S_T0}, s{S_T0}, s{S_T1}
    s_nop 4""")
    for ct in range(4):
        a(f"""v_add_f32 v{A_ACC+4*ct}, v{A_ACC+4*ct}, v{A_ACC+4*ct+1}
        v_add_f32 v{A_ACC+4*ct+2}, v{A_ACC+4*ct+2}, v{A_ACC+4*ct+3}""")
    a(f"""v_cvt_pk_bf16_f32 v4, v{A_ACC}, v{A_ACC+4}
    v_cvt_pk_bf16_f32 v5, v{A_ACC+8}, v{A_ACC+12}
    v_cvt_pk_bf16_f32 v6, v{A_ACC+2}, v{A_ACC+6}
    v_cvt_pk_bf16_f32 v7, v{A_ACC+10}, v{A_ACC+14}
    buffer_store_dwordx2 v[4:5], v2, {sr(R_OUT,4)}, s{S_T0} offen offset:1024
    buffer_store_dwordx2 v[6:7], v2, {sr(R_OUT,4)}, s{S_T0} offen offset:3072""")


def attention(a, sc, loop):
    at_kmax(a)
    slow0 = at_round_start(a, sc)
    at_call(a, loop, 4)
    a("s_waitcnt vmcnt(0)\ns_barrier")
    at_call(a, loop, 4)
    at_flush(a)
    for i in range(0, 4, 2):
        a(f"v_mov_b64 {vr(A_Q+i,2)}, {vr(A_Q1+i,2)}")
    slow1 = at_round_start(a, sc)
    at_call(a, loop, 1)
    a("s_barrier")
    at_finish(a, 0, 0)
    at_call(a, loop, 1)
    a("s_barrier")
    skip = a.label("stag")
    a(f"""s_cmp_eq_u32 s{S_KAP}, 0
    s_cbranch_scc1 {skip}""")
    at_call(a, loop, 1)
    a(f"{skip}:")
    at_proj(a, 0)
    at_issue_w(a, 4*65536, sc)
    a(f"""s_sub_u32 s{S_CNT}, 6, s{S_KAP}
    s_call_b64 {sr(S_RET,2)}, {loop}""")
    at_flush(a)
    a("s_waitcnt lgkmcnt(0)\ns_barrier")
    at_finish(a, 1, 0)
    a("s_waitcnt vmcnt(0) lgkmcnt(0)\ns_barrier")
    at_proj(a, 1)
    at_store(a)
    return [slow0, slow1]


def kernel_header(name):
    return f""".globl {name}
.p2align 8
.type {name},@function
{name}:
"""

def kernel_desc(name, vgpr=256, sgpr=96):
    return f""".p2align 6
.amdhsa_kernel {name}
  .amdhsa_next_free_vgpr {vgpr}
  .amdhsa_next_free_sgpr {sgpr}
  .amdhsa_accum_offset {vgpr}
  .amdhsa_group_segment_fixed_size 0
  .amdhsa_kernarg_size 136
  .amdhsa_user_sgpr_count 2
  .amdhsa_user_sgpr_kernarg_segment_ptr 1
  .amdhsa_system_sgpr_workgroup_id_x 1
.end_amdhsa_kernel
"""


def build_split():
    ka, kb = "proj_kernel", "main_kernel"
    a = Asm()
    prologue(a, "L_endA")
    g_setup(a)
    g_issue_small(a)
    g_issue_slots(a, [0, 1])
    g_issue_wkv(a)
    g_issue_slots(a, [2, 3, 4, 5, 6, 7])
    g_addr(a)
    a("v_add_u32 v19, 8192, v13")
    g_zero(a)
    a("s_waitcnt vmcnt(18)\ns_barrier")
    phase_u_wt(a, "")
    a("s_waitcnt vmcnt(0)\ns_barrier")
    g_compute(a, [0, 1, 2, 3])
    g_half_shift(a)
    g_compute(a, [4, 5, 6, 7])
    g_epilogue(a, "")
    a("L_endA:\ns_endpgm")
    A = a.text()

    b = Asm(); b.uid = 1000
    prologue(b, "L_endB")
    kg_issue_loads(b)
    cv_issue_u(b, "")
    b(f"v_lshlrev_b32 v{A_L16}, 4, v1")
    at_issue_kv(b, list(range(0, 16)), "")
    kg_valu(b, 9)
    b("s_waitcnt lgkmcnt(0)\ns_barrier")
    kg_mfma(b)
    b("s_barrier")
    at_issue_kv(b, list(range(16, EARLY_STEPS)), "")
    b("s_nop 7")
    kg_copy0(b)
    b(f"s_waitcnt vmcnt({8 + (EARLY_STEPS-16)//2})")
    cv_write_u(b)
    b("s_waitcnt lgkmcnt(0)\ns_barrier")
    kg_expand(b)
    b("s_waitcnt lgkmcnt(0)\ns_barrier")
    cv_main(b)
    b("s_waitcnt lgkmcnt(0)\ns_barrier")
    at_issue_q(b, "")
    cv_epilogue(b)
    b("s_waitcnt vmcnt(4)\ns_barrier")
    at_issue_kv(b, list(range(EARLY_STEPS, 32)), "")
    at_issue_w(b, 0, "")
    at_consts(b)
    slows = attention(b, "", "L_attn_loop")
    b("L_endB:\ns_endpgm")
    for s in slows:
        s(b)
    at_loop(b, "L_attn_loop")
    B = b.text()

    hdr = open(f"cdna_kernels/{NAME}.s.ref").read().split("; Override launch")[0]
    out = hdr
    out += f"; @launch kernel={ka} grid=(256,1,1) block=(512,1,1) lds={LDS_BYTES}\n"
    out += f"; @launch kernel={kb} grid=(256,1,1) block=(512,1,1) lds={LDS_BYTES}\n"
    out += '.amdgcn_target "amdgcn-amd-amdhsa--gfx950"\n.text\n'
    out += kernel_header(ka) + A + kernel_header(kb) + B
    out += '.section .rodata,"a"\n' + kernel_desc(ka) + kernel_desc(kb)
    return out


if __name__ == "__main__":
    mode = sys.argv[1] if len(sys.argv) > 1 else "split"
    dst = sys.argv[2] if len(sys.argv) > 2 else f"cdna_kernels/{NAME}.s"
    txt = {"split": build_split}[mode]()
    open(dst, "w").write(txt)
    print("wrote", dst, len(txt), "bytes")
```

```python
import sys, struct, math

NAME = "concat_heads__ssm_conv_s4__grouped_kv_mqa__prompt"
OPT = dict(diag=False, force_fb=False, prio_lo=0, prio_hi=5, prefetch=True)

def f2u(x):
    return struct.unpack("<I", struct.pack("<f", x))[0]

WS_QF = 0
WS_UT = 2 << 20
WS_WT = 4 << 20
WS_KV = WS_WT + (512 << 10)
WS_KN = WS_KV + (128 << 10)
WS_FA = WS_KN + 1024
WS_FB = WS_FA + 1024
WS_EP = WS_FB + 1024
WS_SIZE = WS_EP + 1024
WS_DIAG = 8 << 20

L_G = 0
L_XY = 65536
XY_ROW = 544
XY_CH = 32 * XY_ROW
L_X = L_XY
L_Y = L_XY + 2 * XY_CH
L_WKV = 135168
L_UTILE = 151552
L_WOT = 159744
KC_COPY = 4160
KC_CH = 4 * KC_COPY
L_QS = 65536
L_KNS = L_QS + 8192
L_TO = L_KNS + 1024
L_UR = 82432
L_KC = 97792
L_PB = 131072
L_KV = 0
L_XB = 131072
L_OA = L_XB + 8 * 2304
LDS_BYTES = 163840
EARLY = 16

S_U, S_ARE, S_AIM, S_BRE, S_BIM, S_CRE, S_CIM, S_LDT = 16, 18, 20, 22, 24, 26, 28, 30
S_DSK, S_X, S_WQ, S_WK, S_WV, S_WO, S_OUT, S_DBG, S_WS = 32, 34, 36, 38, 40, 42, 44, 46, 48
R_WS, R_OUT, R_X, R_WQ, R_U, R_WO, R_WKV = 52, 56, 60, 64, 68, 72, 76
S_TASK = 3
S_LIN, S_WAVE, S_RB, S_CB, S_C0 = 4, 5, 6, 7, 8
S_T0, S_T1, S_T2, S_T3 = 9, 10, 11, 12
S_CNT = 13
S_VMASK = 14
S_FB = 50
S_TAG = 51
S_PC = 80
S_SAVE = 82
S_DT, S_DS = 84, 85
S_K0, S_K1 = 86, 87
S_W0, S_W1 = 88, 89
S_KAP = 90
S_TOF = 91
S_M0 = 92
S_Y0 = 93
SC = "sc1"


def vr(a, n): return f"v[{a}:{a+n-1}]"
def sr(a, n): return f"s[{a}:{a+n-1}]"


class Asm:
    def __init__(self):
        self.lines = []
        self.uid = 0
        self.stamp_names = []
    def __call__(self, s):
        for ln in s.split("\n"):
            ln = ln.strip()
            if ln:
                self.lines.append(("" if ln.endswith(":") else "    ") + ln)
    def c(self, s):
        self.lines.append("    ; " + s)
    def label(self, base):
        self.uid += 1
        return f"L_{base}_{self.uid}"
    def text(self):
        return "\n".join(self.lines) + "\n"
    def stamp(self, name, real=False):
        if not OPT["diag"]:
            return
        if name in self.stamp_names:
            i = self.stamp_names.index(name)
        else:
            i = len(self.stamp_names); self.stamp_names.append(name)
        self(f"""{'s_memrealtime' if real else 's_memtime'} s[94:95]
        s_waitcnt lgkmcnt(0)
        v_writelane_b32 v{V_STAMP}, s94, {i}""")
    def stamp_dump(self):
        if not OPT["diag"]:
            return
        self(f"""v_lshlrev_b32 v3, 2, v1
        s_lshl_b32 s{S_T0}, s2, 3
        s_add_u32 s{S_T0}, s{S_T0}, s{S_WAVE}
        s_lshl_b32 s{S_T0}, s{S_T0}, 8
        s_add_u32 s{S_T0}, s{S_T0}, {WS_DIAG}
        s_mov_b32 s{R_WS+2}, {WS_DIAG + (4<<20)}
        buffer_store_dword v{V_STAMP}, v3, {sr(R_WS,4)}, s{S_T0} offen""")
        self.lines.append(f"; STAMPS 0 " + ",".join(self.stamp_names))

V_STAMP = 10
V_L16 = 15


def srd(a, R, P, size):
    a(f"""s_mov_b32 s{R}, s{P}
    s_mov_b32 s{R+1}, s{P+1}
    s_mov_b32 s{R+2}, {size:#x}
    s_mov_b32 s{R+3}, 0x00020000""")


def prologue(a):
    a(f"""s_cmp_ge_u32 s2, 256
    s_cbranch_scc1 L_end
    s_load_dwordx16 s[16:31], s[0:1], 0
    s_load_dwordx16 s[32:47], s[0:1], 64
    s_load_dwordx2 s[48:49], s[0:1], 128""")
    if OPT["prefetch"]:
        a.c("pull the kernel's own code into L2 (instruction fetch is slow from cold memory)")
        sk = a.label("nopf")
        a(f"""s_getpc_b64 {sr(S_PC,2)}
        L_pc_ref:
        v_sub_u32 v2, 511, v0
        v_lshlrev_b32 v2, 7, v2
        v_cmp_gt_u32 vcc, (L_code_end - L_pc_ref), v2
        s_and_saveexec_b64 {sr(S_SAVE,2)}, vcc
        s_cbranch_execz {sk}
        global_load_dword v255, v2, {sr(S_PC,2)}
        {sk}:
        s_mov_b64 exec, -1""")
    a(f"""s_and_b32 s{S_T0}, s2, 7
    s_lshl_b32 s{S_T0}, s{S_T0}, 5
    s_lshr_b32 s{S_T1}, s2, 3
    s_add_u32 s{S_LIN}, s{S_T0}, s{S_T1}
    s_mov_b32 s{S_TASK}, s{S_LIN}
    s_mov_b32 s{S_FB}, 0
    s_mov_b32 s{S_TOF}, 0
    v_lshrrev_b32 v2, 6, v0
    v_and_b32 v1, 63, v0
    v_readfirstlane_b32 s{S_WAVE}, v2
    v_lshlrev_b32 v{V_L16}, 4, v1
    s_waitcnt lgkmcnt(0)""")
    srd(a, R_WS, S_WS, WS_SIZE)
    srd(a, R_OUT, S_OUT, 4 << 20)
    srd(a, R_X, S_X, 2 << 20)
    srd(a, R_WQ, S_WQ, 512 << 10)
    srd(a, R_U, S_U, 2 << 20)
    srd(a, R_WO, S_WO, 512 << 10)


def task_setup(a):
    a(f"""s_lshr_b32 s{S_RB}, s{S_TASK}, 3
    s_and_b32 s{S_CB}, s{S_TASK}, 7
    s_bitcmp1_b32 s{S_CB}, 0
    s_cselect_b32 s{R_WKV}, s{S_WV}, s{S_WK}
    s_cselect_b32 s{R_WKV+1}, s{S_WV+1}, s{S_WK+1}
    s_mov_b32 s{R_WKV+2}, 0x4000
    s_mov_b32 s{R_WKV+3}, 0x00020000
    s_lshl_b32 s{S_T0}, s{S_RB}, 1
    s_add_u32 s{S_C0}, s{S_T0}, s{S_CB}
    s_and_b32 s{S_C0}, s{S_C0}, 7""")


def dma_voffs(a, vt, dx, dw):
    a(f"""v_lshrrev_b32 v3, 3, {vt}
    v_and_b32 v4, 7, {vt}
    v_bfe_u32 v5, v3, 1, 3
    v_xor_b32 v5, v5, v4
    v_lshlrev_b32 v5, 4, v5
    v_lshl_add_u32 v{dx}, v3, 10, v5
    v_and_b32 v5, 2, v3
    v_bfe_u32 v6, v3, 3, 1
    v_lshl_or_b32 v5, v6, 2, v5
    v_xor_b32 v5, v5, v4
    v_lshlrev_b32 v5, 4, v5
    v_lshl_add_u32 v{dw}, v3, 10, v5""")


def slot_soffs(a, s):
    a(f"""s_add_u32 s{S_T2}, s{S_C0}, {s}
    s_and_b32 s{S_T2}, s{S_T2}, 7
    s_lshl_b32 s{S_T0}, s{S_T2}, 7
    s_lshl_b32 s{S_T3}, s{S_RB}, 16
    s_add_u32 s{S_T0}, s{S_T0}, s{S_T3}
    s_lshl_b32 s{S_T1}, s{S_T2}, 16
    s_lshl_b32 s{S_T3}, s{S_CB}, 7
    s_add_u32 s{S_T1}, s{S_T1}, s{S_T3}""")


def l_waves(a):
    X0, X1, W0, W1 = 20, 21, 22, 23
    a(f"""s_sub_u32 s{S_M0}, s{S_WAVE}, 4
    s_lshl_b32 s{S_T0}, s{S_M0}, 7
    v_add_u32 v2, s{S_T0}, v1""")
    dma_voffs(a, "v2", X0, W0)
    a(f"""s_lshl_b32 s{S_M0}, s{S_M0}, 11
    v_add_u32 v{X1}, 8192, v{X0}
    v_xor_b32 v{X1}, 64, v{X1}
    v_add_u32 v{W1}, 8192, v{W0}
    v_xor_b32 v{W1}, 64, v{W1}""")
    def pair(R, soff, lds, r0, r1):
        a(f"""s_add_u32 m0, s{S_M0}, {lds}
        s_nop 0
        buffer_load_dwordx4 v{r0}, {sr(R,4)}, {soff} offen lds
        s_add_u32 m0, s{S_M0}, {lds + 1024}
        s_nop 0
        buffer_load_dwordx4 v{r1}, {sr(R,4)}, {soff} offen lds""")
    a.c("u tile (2 per wave)")
    a(f"""s_and_b32 s{S_T0}, s{S_TASK}, 31
    s_lshl_b32 s{S_T0}, s{S_T0}, 16
    s_lshr_b32 s{S_T1}, s{S_TASK}, 5
    s_lshl_b32 s{S_T1}, s{S_T1}, 7
    s_add_u32 s{S_T0}, s{S_T0}, s{S_T1}""")
    pair(R_U, f"s{S_T0}", L_UTILE, W0, W1)
    a.c("wo tile: wave 4 loads both octets (others skip)")
    sk = a.label("nowo")
    a(f"""s_cmp_lg_u32 s{S_WAVE}, 4
    s_cbranch_scc1 {sk}
    s_lshl_b32 s{S_T0}, s{S_RB}, 14
    s_lshl_b32 s{S_T1}, s{S_CB}, 7
    s_add_u32 s{S_T0}, s{S_T0}, s{S_T1}""")
    pair(R_WO, f"s{S_T0}", L_WOT, W0, W1)
    a(f"{sk}:")
    def slot(s):
        slot_soffs(a, s)
        pair(R_X, f"s{S_T0}", L_G + s*16384, X0, X1)
        pair(R_WQ, f"s{S_T1}", L_G + s*16384 + 8192, W0, W1)
    slot(0); slot(1)
    a.c("---- u transpose of this wave's own 16 rows ----")
    a(f"""v_lshrrev_b32 v2, 4, v1
    v_bfe_u32 v3, v1, 2, 2
    v_lshrrev_b32 v4, 1, v3
    v_xor_b32 v4, v4, v2
    v_lshlrev_b32 v4, 5, v4
    v_lshl_add_u32 v4, v3, 7, v4
    v_and_b32 v5, 3, v1
    v_lshl_add_u32 v4, v5, 3, v4
    s_add_u32 s{S_T0}, s{S_M0}, {L_UTILE}
    v_add_u32 v6, s{S_T0}, v4
    v_xor_b32 v7, 64, v6
    v_lshlrev_b32 v8, 12, v1
    s_lshr_b32 s{S_T0}, s{S_TASK}, 5
    s_lshl_b32 s{S_T0}, s{S_T0}, 18
    s_and_b32 s{S_T1}, s{S_TASK}, 31
    s_lshl_b32 s{S_T1}, s{S_T1}, 7
    s_add_u32 s{S_T0}, s{S_T0}, s{S_T1}
    s_lshr_b32 s{S_T1}, s{S_M0}, 6
    s_add_u32 s{S_T0}, s{S_T0}, s{S_T1}
    s_add_u32 s{S_T0}, s{S_T0}, {WS_UT}
    s_waitcnt vmcnt(8)
    ds_read_b64_tr_b16 v[24:25], v6
    ds_read_b64_tr_b16 v[26:27], v6 offset:512
    ds_read_b64_tr_b16 v[28:29], v7 offset:1024
    ds_read_b64_tr_b16 v[30:31], v7 offset:1536
    s_waitcnt lgkmcnt(2)
    buffer_store_dwordx4 v[24:27], v8, {sr(R_WS,4)}, s{S_T0} offen {SC}
    s_waitcnt lgkmcnt(0)
    buffer_store_dwordx4 v[28:31], v8, {sr(R_WS,4)}, s{S_T0} offen offset:16 {SC}""")
    a.c("---- wo fragments (wave 4) ----")
    sk = a.label("nowt")
    a(f"""s_cmp_lg_u32 s{S_WAVE}, 4
    s_cbranch_scc1 {sk}
    v_bfe_u32 v3, v1, 2, 1
    v_bfe_u32 v4, v1, 3, 1
    v_lshl_add_u32 v3, v4, 2, v3
    v_lshlrev_b32 v3, 7, v3
    v_lshl_add_u32 v3, v5, 3, v3
    v_lshl_add_u32 v3, v2, 5, v3
    v_add_u32 v3, {L_WOT}, v3
    v_xor_b32 v4, 32, v3
    v_xor_b32 v6, 64, v3
    v_xor_b32 v7, 96, v3
    ds_read_b64_tr_b16 v[32:33], v3
    ds_read_b64_tr_b16 v[34:35], v4 offset:256
    ds_read_b64_tr_b16 v[36:37], v6 offset:1024
    ds_read_b64_tr_b16 v[38:39], v7 offset:1280
    v_lshrrev_b32 v2, 2, v1
    v_lshlrev_b32 v2, 4, v2
    v_lshl_add_u32 v2, v5, 11, v2
    s_lshr_b32 s{S_T0}, s{S_RB}, 2
    s_lshl_b32 s{S_T0}, s{S_T0}, 16
    s_lshl_b32 s{S_T1}, s{S_CB}, 13
    s_add_u32 s{S_T0}, s{S_T0}, s{S_T1}
    s_and_b32 s{S_T1}, s{S_RB}, 3
    s_lshl_b32 s{S_T1}, s{S_T1}, 9
    s_add_u32 s{S_T0}, s{S_T0}, s{S_T1}
    s_add_u32 s{S_T0}, s{S_T0}, {WS_WT}
    s_waitcnt lgkmcnt(0)
    buffer_store_dwordx4 v[32:35], v2, {sr(R_WS,4)}, s{S_T0} offen {SC}
    buffer_store_dwordx4 v[36:39], v2, {sr(R_WS,4)}, s{S_T0} offen offset:256 {SC}
    {sk}:""")
    slot(2); slot(3)
    a.c("wkv: wave j loads slots 2j, 2j+1 (2KB each)")
    for i in range(2):
        a(f"""s_lshr_b32 s{S_T0}, s{S_M0}, 10
        s_add_u32 s{S_T0}, s{S_T0}, s{S_C0}
        s_add_u32 s{S_T0}, s{S_T0}, {i}
        s_and_b32 s{S_T0}, s{S_T0}, 7
        s_lshl_b32 s{S_T0}, s{S_T0}, 11
        s_lshl_b32 s{S_T1}, s{S_M0}, 1
        s_add_u32 m0, s{S_T1}, {L_WKV + 2048*i}
        s_nop 0
        buffer_load_dwordx4 v{V_L16}, {sr(R_WKV,4)}, s{S_T0} offen lds
        buffer_load_dwordx4 v{V_L16}, {sr(R_WKV,4)}, s{S_T0} offen offset:1024 lds""")
    a.c("u/wo stores complete (12 younger loads may stay in flight)")
    a("s_waitcnt vmcnt(12)")


KGP = 96
KG = 104
KG_D = 92
V_EP = 11

def cmul_ops(D, P, W, T):
    return [f"v_pk_mul_f32 {vr(T,2)}, {vr(P,2)}, {vr(W,2)} op_sel:[0,0] op_sel_hi:[0,1]",
            f"v_pk_fma_f32 {vr(D,2)}, {vr(P,2)}, {vr(W,2)}, {vr(T,2)} op_sel:[1,1,0] op_sel_hi:[1,0,1] neg_lo:[1,0,0]"]


def s_waves(a):
    a(f"""v_lshlrev_b32 v2, 1, v0
    s_lshl_b32 s{S_T0}, s{S_LIN}, 9
    v_add_u32 v2, s{S_T0}, v2
    global_load_ushort v{KGP}, v2, {sr(S_ARE,2)}
    global_load_ushort v{KGP+1}, v2, {sr(S_AIM,2)}
    global_load_ushort v{KGP+2}, v2, {sr(S_BRE,2)}
    global_load_ushort v{KGP+3}, v2, {sr(S_BIM,2)}
    global_load_ushort v{KGP+4}, v2, {sr(S_CRE,2)}
    global_load_ushort v{KGP+5}, v2, {sr(S_CIM,2)}""")
    LOG2E = math.log2(math.e)
    L_hi = struct.unpack("<f", struct.pack("<f", LOG2E))[0]
    L_lo = LOG2E - L_hi
    AL, BE, DT = KG, KG + 1, KG + 2
    T = KG + 4
    a(f"""s_waitcnt lgkmcnt(0)
    s_bitcmp1_b32 s{S_WAVE}, 1
    s_cselect_b32 s{S_T0}, 0, 16
    s_lshl_b32 s{S_T0}, s{S_DT}, s{S_T0}
    s_and_b32 s{S_T0}, s{S_T0}, 0xffff0000
    s_mov_b32 s{S_K0}, {f2u(L_hi):#x}
    v_mov_b32 v{T}, s{S_T0}
    v_mul_f32 v{T+1}, s{S_K0}, v{T}
    v_fma_f32 v{T+2}, v{T}, s{S_K0}, -v{T+1}
    v_fmac_f32 v{T+2}, {f2u(L_lo):#x}, v{T}
    v_exp_f32 v{T+1}, v{T+1}
    v_mul_f32 v{T+2}, {f2u(math.log(2.0)):#x}, v{T+2}
    v_fma_f32 v{T+1}, v{T+1}, v{T+2}, v{T+1}
    v_cvt_pk_bf16_f32 v{T+1}, v{T+1}, v{T+1}
    v_lshlrev_b32 v{DT}, 16, v{T+1}
    v_and_b32 v2, 127, v0
    v_lshlrev_b32 v2, 2, v2
    s_lshr_b32 s{S_T0}, s{S_WAVE}, 1
    s_mul_i32 s{S_T0}, s{S_T0}, {XY_CH}
    s_add_u32 s{S_T0}, s{S_T0}, {L_XY}
    v_add_u32 v2, s{S_T0}, v2
    v_mov_b32 v3, 0x3f80
    ds_write_b32 v2, v3 offset:{2*XY_CH}""")
    a.stamp("pre_params")
    a("s_waitcnt vmcnt(4)")
    a.stamp("params")
    a(f"""v_lshlrev_b32 v{KGP}, 16, v{KGP}
    v_lshlrev_b32 v{KGP+1}, 16, v{KGP+1}
    v_mul_f32 v{AL}, v{DT}, v{KGP}
    v_mul_f32 v{BE}, v{DT}, v{KGP+1}
    v_mul_f32 v{AL}, s{S_K0}, v{AL}
    v_mul_f32 v{BE}, 0.15915494, v{BE}""")
    Z, W, Z8, Z32 = KG + 12, KG + 14, KG + 16, KG + 18
    anchors = ((Z, 1.0, 1.0), (W, 256.0, 256.0), (Z8, 8.0, -8.0), (Z32, 32.0, -32.0))
    for i, (D, pa, pb) in enumerate(anchors):
        a(f"""v_mul_f32 v{T+2*i}, {f2u(pa):#x}, v{AL}
        v_mul_f32 v{T+2*i+1}, {f2u(pb):#x}, v{BE}""")
    for i, (D, pa, pb) in enumerate(anchors):
        a(f"""v_exp_f32 v{T+2*i}, v{T+2*i}
        v_fract_f32 v{T+2*i+1}, v{T+2*i+1}""")
    for i, (D, pa, pb) in enumerate(anchors):
        a(f"""v_cos_f32 v{D}, v{T+2*i+1}
        v_sin_f32 v{D+1}, v{T+2*i+1}""")
    a("s_waitcnt vmcnt(0)")
    for i in range(2, 6):
        a(f"v_lshlrev_b32 v{KGP+i}, 16, v{KGP+i}")
    for i, (D, pa, pb) in enumerate(anchors):
        a(f"v_pk_mul_f32 {vr(D,2)}, {vr(D,2)}, {vr(T+2*i,2)} op_sel:[0,0] op_sel_hi:[1,0]")
    a(f"v_pk_mul_f32 {vr(KGP+2,2)}, {vr(KGP+2,2)}, {vr(DT,2)} op_sel:[0,0] op_sel_hi:[1,0]")
    P = KG + 20
    C0, C2, C3 = KG + 38, KG + 40, KG + 42
    TX, TY = KG + 44, KG + 52
    OX, OY = KG + 60, KG + 68
    def stream(TT, OO):
        st = dict(k=0, o=0, items=[])
        def mul(D, Pp, Ww):
            st["items"].append(cmul_ops(D, Pp, Ww, TT + 2*(st["k"] & 3))); st["k"] += 1
        def put(src, offs):
            o = OO + (st["o"] & 7); st["o"] += 1
            st["items"].append([f"v_cvt_pk_bf16_f32 v{o}, v{src}, v{src+1}"] + [f"ds_write_b32 v2, v{o} offset:{x}" for x in offs])
        return st, mul, put
    sx, mul, put = stream(TX, OX)
    R = XY_ROW
    mul(P, KGP + 4, KGP + 2)
    for e in range(1, 9):
        mul(P + 2*e, P + 2*(e-1), Z)
        put(P + 2*(e-1), [(e-1)*R])
    slot1 = {0: [8], 2: [9], 4: [10, 12], 6: [13], 8: [14]}
    for e in (0, 2, 4, 6, 8): mul(P + 2*e, P + 2*e, W)
    for e in (0, 2, 4, 6, 8): put(P + 2*e, [s*R for s in slot1[e]])
    for aa in (2, 3):
        for e in (0, 4, 8): mul(P + 2*e, P + 2*e, W)
        for j, e in enumerate((0, 4, 8)): put(P + 2*e, [(16 + 4*(aa-2) + j)*R])
    for aa in (4, 5, 6, 7):
        for e in (0, 8): mul(P + 2*e, P + 2*e, W)
        for j, e in enumerate((0, 8)): put(P + 2*e, [(24 + 2*(aa-4) + j)*R])
    sy, mul, put = stream(TY, OY)
    YB = 2 * XY_CH
    C = [C0, Z8, C2, C3]
    mul(C2, Z8, Z8); put(Z8, [YB + R]); mul(C3, C2, Z8); put(C2, [YB + 2*R]); put(Z32, [YB + 4*R]); put(C3, [YB + 3*R])
    for m in range(1, 8):
        for j in range(4):
            if j == 0:
                if m == 1: continue
                mul(C0, Z32 if m == 2 else C0, Z32)
            else:
                mul(C[j], C[j], Z32)
        for j in range(4):
            if j == 0 and m == 1: continue
            put(C[j], [YB + (4*m + j)*R])
    xs = [i for it in sx["items"] for i in it]
    ys = [i for it in sy["items"] for i in it]
    n = max(len(xs), len(ys))
    for i in range(n):
        if i < len(xs): a(xs[i])
        if i < len(ys): a(ys[i])
    a("s_waitcnt lgkmcnt(0)")


def kg_mfma(a):
    F = KG
    a.c("---- K-gen MFMA: wave = (ch = w>>2, rt = (w>>1)&1, ct = w&1) ----")
    a(f"""v_and_b32 v2, 15, v1
    v_mul_u32_u24 v2, {XY_ROW}, v2
    v_and_b32 v3, 48, v1
    v_add_u32 v2, v2, v3
    s_lshr_b32 s{S_T0}, s{S_WAVE}, 1
    s_mul_i32 s{S_T0}, s{S_T0}, {16*XY_ROW}
    s_add_u32 s{S_T0}, s{S_T0}, {L_X}
    v_add_u32 v8, s{S_T0}, v2
    s_lshr_b32 s{S_T0}, s{S_WAVE}, 2
    s_lshl_b32 s{S_T0}, s{S_T0}, 1
    s_and_b32 s{S_T1}, s{S_WAVE}, 1
    s_add_u32 s{S_T0}, s{S_T0}, s{S_T1}
    s_mul_i32 s{S_T0}, s{S_T0}, {16*XY_ROW}
    s_add_u32 s{S_T0}, s{S_T0}, {L_Y}
    v_add_u32 v9, s{S_T0}, v2""")

def kg_mfma_run(a, filler):
    F = KG
    for ks in range(7):
        a(f"""ds_read_b128 {vr(F+8*ks,4)}, v8 offset:{64*ks}
        ds_read_b128 {vr(F+8*ks+4,4)}, v9 offset:{64*ks}""")
    filler(a)
    for ks in range(8):
        if ks == 0:
            a("s_waitcnt lgkmcnt(12)")
            a(f"v_mfma_f32_16x16x32_bf16 {vr(KG_D,4)}, {vr(F,4)}, {vr(F+4,4)}, 0")
            a(f"""ds_read_b128 {vr(F+56,4)}, v8 offset:{64*7}
            ds_read_b128 {vr(F+60,4)}, v9 offset:{64*7}""")
        else:
            a(f"s_waitcnt lgkmcnt({14 - 2*ks})")
            if ks == 7:
                a("s_waitcnt vmcnt(0)\ns_barrier")
            a(f"v_mfma_f32_16x16x32_bf16 {vr(KG_D,4)}, {vr(F+8*ks,4)}, {vr(F+8*ks+4,4)}, {vr(KG_D,4)}")


G_ACC, G_ACCK, G_ACCV, G_FR = 32, 40, 44, 48
KV_WAVE = 3
GX, GW = 20, 21
GA, GB0, GB1, GKX0, GKX1, GKW = 22, 23, 24, 25, 26, 27

def g_addr(a):
    dma_voffs(a, "v0", GX, GW)
    a(f"""v_lshrrev_b32 v2, 4, v1
    v_bfe_u32 v3, v1, 2, 2
    v_and_b32 v4, 3, v1
    v_lshl_add_u32 v5, v2, 3, v3
    v_lshrrev_b32 v6, 1, v3
    v_and_b32 v7, 1, v2
    v_lshl_or_b32 v6, v7, 1, v6
    s_and_b32 s{S_T0}, s{S_WAVE}, 3
    v_xor_b32 v6, s{S_T0}, v6
    v_lshlrev_b32 v6, 5, v6
    v_lshl_add_u32 v6, v4, 3, v6
    v_lshl_add_u32 v{GA}, v5, 7, v6
    v_add_u32 v{GA}, 8192, v{GA}
    v_lshlrev_b32 v6, 3, v4
    v_lshl_add_u32 v{GKW}, v5, 5, v6
    v_add_u32 v{GKW}, {L_WKV}, v{GKW}
    v_and_b32 v3, 15, v1
    v_lshrrev_b32 v4, 1, v3
    v_xor_b32 v4, v4, v2
    v_lshlrev_b32 v4, 4, v4
    v_lshl_add_u32 v4, v3, 7, v4
    s_lshr_b32 s{S_T0}, s{S_WAVE}, 2
    s_lshl_b32 s{S_T0}, s{S_T0}, 12
    v_add_u32 v{GB0}, s{S_T0}, v4
    v_xor_b32 v{GB1}, 64, v{GB0}
    s_lshr_b32 s{S_T0}, s{S_CB}, 1
    s_lshl_b32 s{S_T0}, s{S_T0}, 11
    v_add_u32 v{GKX0}, s{S_T0}, v4
    v_xor_b32 v{GKX1}, 64, v{GKX0}
    s_lshl_b32 s{S_M0}, s{S_WAVE}, 10""")
    for i in range(0, 16, 2):
        a(f"v_mov_b64 {vr(G_ACC+i,2)}, 0")


def g_steps(a, slots, kv, dma_slots):
    steps = [(s, ks) for s in slots for ks in range(2)]
    nrd = 4 + (3 if kv else 0)
    FS = 20
    def reads(i):
        s, ks = steps[i]
        F = G_FR + (i & 1) * FS
        so = (s & 3) * 16384
        a(f"""ds_read_b64_tr_b16 {vr(F,2)}, v{GA} offset:{so + ks*4096}
        ds_read_b64_tr_b16 {vr(F+2,2)}, v{GA} offset:{so + ks*4096 + 512}
        ds_read_b128 {vr(F+4,4)}, v{GB0+ks} offset:{so}
        ds_read_b128 {vr(F+8,4)}, v{GB0+ks} offset:{so + 2048}""")
        if kv:
            a(f"""ds_read_b64_tr_b16 {vr(F+12,2)}, v{GKW} offset:{s*2048 + ks*1024}
            ds_read_b64_tr_b16 {vr(F+14,2)}, v{GKW} offset:{s*2048 + ks*1024 + 128}
            ds_read_b128 {vr(F+16,4)}, v{GKX0+ks} offset:{so}""")
    def dma(i):
        if i // 2 >= len(dma_slots): return
        s = dma_slots[i // 2]
        if i % 2 == 0:
            slot_soffs(a, s)
            a(f"""s_add_u32 m0, s{S_M0}, {L_G + s*16384}
            s_nop 0
            buffer_load_dwordx4 v{GX}, {sr(R_X,4)}, s{S_T0} offen lds""")
        else:
            a(f"""s_add_u32 m0, s{S_M0}, {L_G + s*16384 + 8192}
            s_nop 0
            buffer_load_dwordx4 v{GW}, {sr(R_WQ,4)}, s{S_T1} offen lds""")
    if dma_slots:
        dma(0); dma(1); dma(2); dma(3)
    reads(0)
    for i in range(len(steps)):
        F = G_FR + (i & 1) * FS
        if i + 1 < len(steps):
            reads(i + 1)
            if dma_slots: dma(i + 4)
            a(f"s_waitcnt lgkmcnt({nrd})")
        else:
            a("s_waitcnt lgkmcnt(0)")
        a(f"""v_mfma_f32_16x16x32_bf16 {vr(G_ACC,4)}, {vr(F,4)}, {vr(F+4,4)}, {vr(G_ACC,4)}
        v_mfma_f32_16x16x32_bf16 {vr(G_ACC+4,4)}, {vr(F,4)}, {vr(F+8,4)}, {vr(G_ACC+4,4)}""")
        if kv:
            a(f"""v_mfma_f32_16x16x32_bf16 {vr(G_ACCK,4)}, {vr(F+12,4)}, {vr(F+16,4)}, {vr(G_ACCK,4)}
            v_mfma_f32_16x16x32_bf16 {vr(G_ACCV,4)}, {vr(F+16,4)}, {vr(F+12,4)}, {vr(G_ACCV,4)}""")


def g_compute(a):
    lk = a.label("gkv"); le = a.label("gend")
    a(f"""s_cmp_eq_u32 s{S_WAVE}, {KV_WAVE}
    s_cbranch_scc1 {lk}""")
    for kv in (False, True):
        if kv: a(f"s_branch {le}\n{lk}:")
        g_steps(a, [0, 1, 2, 3], kv, [4, 5, 6, 7])
        for r in (GA, GB0, GB1, GKX0, GKX1):
            a(f"v_add_u32 v{r}, 0x10000, v{r}")
        a.stamp("g_half1")
        a("s_waitcnt vmcnt(4)\ns_barrier")
        g_steps(a, [4, 5], kv, [])
        a("s_waitcnt vmcnt(0)\ns_barrier")
        a.stamp("g_land")
        g_steps(a, [6, 7], kv, [])
    a(f"{le}:")


def g_epilogue(a):
    a.c("---- Q store ----")
    a(f"""v_bfe_u32 v2, v1, 3, 2
    v_lshlrev_b32 v2, 13, v2
    v_lshrrev_b32 v3, 5, v1
    v_lshl_add_u32 v2, v3, 9, v2
    v_and_b32 v3, 7, v1
    v_lshl_add_u32 v2, v3, 4, v2
    s_lshl_b32 s{S_T0}, s{S_RB}, 16
    s_lshr_b32 s{S_T1}, s{S_WAVE}, 2
    s_lshl_b32 s{S_T1}, s{S_T1}, 15
    s_add_u32 s{S_T0}, s{S_T0}, s{S_T1}
    s_lshl_b32 s{S_T1}, s{S_CB}, 10
    s_add_u32 s{S_T0}, s{S_T0}, s{S_T1}
    s_and_b32 s{S_T1}, s{S_WAVE}, 3
    s_lshl_b32 s{S_T1}, s{S_T1}, 7
    s_add_u32 s{S_T0}, s{S_T0}, s{S_T1}
    v_cvt_pk_bf16_f32 v20, v{G_ACC}, v{G_ACC+1}
    v_cvt_pk_bf16_f32 v21, v{G_ACC+2}, v{G_ACC+3}
    v_cvt_pk_bf16_f32 v22, v{G_ACC+4}, v{G_ACC+5}
    v_cvt_pk_bf16_f32 v23, v{G_ACC+6}, v{G_ACC+7}
    s_nop 1
    v_permlane16_swap_b32 v20, v22
    v_permlane16_swap_b32 v21, v23
    buffer_store_dwordx4 v[20:23], v2, {sr(R_WS,4)}, s{S_T0} offen {SC}""")
    le = a.label("kvend"); lv = a.label("isv")
    scale = 0.25 * math.log2(math.e)
    a(f"""s_cmp_lg_u32 s{S_WAVE}, {KV_WAVE}
    s_cbranch_scc1 {le}
    v_lshrrev_b32 v2, 5, v1
    v_lshlrev_b32 v2, 9, v2
    v_and_b32 v3, 15, v1
    v_lshl_add_u32 v2, v3, 4, v2
    v_bfe_u32 v3, v1, 4, 1
    v_lshl_add_u32 v2, v3, 3, v2
    s_lshr_b32 s{S_T0}, s{S_TASK}, 2
    s_lshl_b32 s{S_T0}, s{S_T0}, 11
    s_bfe_u32 s{S_T1}, s{S_CB}, 0x10001
    s_lshl_b32 s{S_T1}, s{S_T1}, 8
    s_add_u32 s{S_T0}, s{S_T0}, s{S_T1}
    s_add_u32 s{S_T0}, s{S_T0}, {WS_KV}
    s_bitcmp1_b32 s{S_CB}, 0
    s_cbranch_scc1 {lv}""")
    for i in range(4):
        a(f"v_mul_f32 v{G_ACCK+i}, {f2u(scale):#x}, v{G_ACCK+i}")
    a(f"""v_cvt_pk_bf16_f32 v24, v{G_ACCK}, v{G_ACCK+1}
    v_cvt_pk_bf16_f32 v25, v{G_ACCK+2}, v{G_ACCK+3}
    buffer_store_dwordx2 v[24:25], v2, {sr(R_WS,4)}, s{S_T0} offen {SC}
    v_mul_f32 v4, v{G_ACCK}, v{G_ACCK}
    v_fmac_f32 v4, v{G_ACCK+1}, v{G_ACCK+1}
    v_fmac_f32 v4, v{G_ACCK+2}, v{G_ACCK+2}
    v_fmac_f32 v4, v{G_ACCK+3}, v{G_ACCK+3}
    v_mov_b32 v5, v4
    s_nop 1
    v_permlane32_swap_b32 v4, v5
    s_nop 1
    v_add_f32 v4, v4, v5
    v_mov_b32 v5, v4
    s_nop 1
    v_permlane16_swap_b32 v4, v5
    s_nop 1
    v_add_f32 v4, v4, v5
    s_nop 1
    v_max_f32_dpp v4, v4, v4 row_ror:8 row_mask:0xf bank_mask:0xf
    s_nop 1
    v_max_f32_dpp v4, v4, v4 row_ror:4 row_mask:0xf bank_mask:0xf
    s_nop 1
    v_max_f32_dpp v4, v4, v4 row_ror:2 row_mask:0xf bank_mask:0xf
    s_nop 1
    v_max_f32_dpp v4, v4, v4 row_ror:1 row_mask:0xf bank_mask:0xf
    s_lshl_b32 s{S_T0}, s{S_TASK}, 1
    s_add_u32 s{S_T0}, s{S_T0}, {WS_KN}
    v_mov_b32 v5, 0
    s_mov_b64 exec, 1
    buffer_store_dword v4, v5, {sr(R_WS,4)}, s{S_T0} offen {SC}
    s_mov_b64 exec, -1
    s_branch {le}
    {lv}:
    v_cvt_pk_bf16_f32 v24, v{G_ACCV}, v{G_ACCV+1}
    v_cvt_pk_bf16_f32 v25, v{G_ACCV+2}, v{G_ACCV+3}
    buffer_store_dwordx2 v[24:25], v2, {sr(R_WS,4)}, s{S_T0} offen offset:1024 {SC}
    {le}:""")


def flag_store(a, base, wave):
    sk = a.label("nofl")
    a(f"""s_lshl_b32 s{S_T0}, s{S_FB}, 4
    s_add_u32 s{S_T0}, s{S_T0}, s{S_WAVE}
    s_cmp_lg_u32 s{S_T0}, {wave}
    s_cbranch_scc1 {sk}
    s_lshl_b32 s{S_T0}, s{S_LIN}, 2
    s_add_u32 s{S_T0}, s{S_T0}, {base}
    v_mov_b32 v2, 0
    v_mov_b32 v3, s{S_TAG}
    s_mov_b64 exec, 1
    buffer_store_dword v3, v2, {sr(R_WS,4)}, s{S_T0} offen {SC}
    s_mov_b64 exec, -1
    {sk}:""")


SPIN_MAX = 20000

def SEL(lo, hi):
    return (2*lo) | ((2*lo+1) << 8) | ((2*hi) << 16) | ((2*hi+1) << 24)


def kg_copy0(a):
    a.c("---- K copy0 + zero fill ----")
    a(f"""v_cvt_pk_bf16_f32 v20, v{KG_D}, v{KG_D+1}
    v_cvt_pk_bf16_f32 v21, v{KG_D+2}, v{KG_D+3}
    v_mov_b64 v[24:25], 0
    v_mov_b64 v[26:27], 0
    v_lshlrev_b32 v2, 4, v0
    v_cmp_le_u32 vcc, 160, v0
    v_mov_b32 v3, {96*80 - 2560}
    v_add_u32 v2, {L_UR}, v2
    v_cndmask_b32 v3, 0, v3, vcc
    v_add_u32 v2, v2, v3
    v_subrev_u32 v4, 320, v0
    v_lshrrev_b32 v5, 2, v4
    v_mul_u32_u24 v5, {KC_COPY}, v5
    v_and_b32 v4, 3, v4
    v_cmp_le_u32 vcc, 320, v0
    v_lshl_add_u32 v5, v4, 4, v5
    v_add_u32 v5, {L_KC + 4096}, v5
    v_cndmask_b32 v2, v2, v5, vcc
    v_cmp_le_u32 vcc, 352, v0
    v_mov_b32 v5, {L_TO}
    v_and_b32 v6, 15, v1
    v_cndmask_b32 v2, v2, v5, vcc
    ds_write_b128 v2, v[24:27]
    v_lshlrev_b32 v2, 4, v6
    s_lshr_b32 s{S_T0}, s{S_WAVE}, 2
    s_mul_i32 s{S_T0}, s{S_T0}, {KC_CH}
    s_and_b32 s{S_T1}, s{S_WAVE}, 1
    s_lshl_b32 s{S_T1}, s{S_T1}, 8
    s_sub_u32 s{S_T0}, s{S_T0}, s{S_T1}
    s_add_u32 s{S_T0}, s{S_T0}, {L_KC}
    v_sub_u32 v2, s{S_T0}, v2
    v_lshrrev_b32 v3, 5, v1
    v_bfe_u32 v4, v1, 4, 1
    v_cmp_le_u32 vcc, 32, v1""")
    l1 = a.label("rt1"); le = a.label("c0e")
    a(f"""s_bitcmp1_b32 s{S_WAVE}, 1
    s_cbranch_scc1 {l1}
    v_lshlrev_b32 v3, 9, v3
    v_lshl_add_u32 v3, v4, 3, v3
    v_sub_u32 v2, v2, v3
    v_mov_b32 v5, {SEL(3,2):#x}
    v_mov_b32 v6, {SEL(2,1):#x}
    v_cndmask_b32 v5, v5, v6, vcc
    v_mov_b32 v6, {SEL(1,0):#x}
    v_mov_b32 v7, {SEL(0,0):#x}
    v_cndmask_b32 v6, v6, v7, vcc
    v_perm_b32 v22, v21, v20, v5
    v_perm_b32 v23, v21, v20, v6
    ds_write_b64 v2, v[22:23] offset:{2*2044}
    s_branch {le}
    {l1}:
    v_lshlrev_b32 v4, 9, v4
    v_add_u32 v4, 1024, v4
    v_lshlrev_b32 v4, v3, v4
    v_sub_u32 v2, v2, v4
    v_mov_b32 v5, {SEL(2,2):#x}
    v_mov_b32 v6, {SEL(1,1):#x}
    v_cndmask_b32 v5, v5, v6, vcc
    v_and_b32 v7, 1, v1
    v_mul_u32_u24 v7, 0x202, v7
    v_lshlrev_b32 v7, 16, v7
    v_add_u32 v7, {SEL(1,0):#x}, v7
    v_cndmask_b32 v6, v6, v7, vcc
    v_mov_b32 v8, {SEL(1,0):#x}
    v_mov_b32 v9, {SEL(0,0):#x}
    v_cndmask_b32 v8, v8, v9, vcc
    v_perm_b32 v24, v21, v20, v5
    v_perm_b32 v25, v21, v20, v6
    v_perm_b32 v26, v21, v20, v8
    v_perm_b32 v27, v21, v20, v9
    ds_write_b128 v2, v[24:27] offset:{2*2040}
    v_perm_b32 v28, v20, v21, v5
    v_perm_b32 v29, v20, v21, v6
    v_perm_b32 v30, v20, v21, v8
    v_perm_b32 v31, v20, v21, v9
    s_mov_b64 exec, vcc
    ds_write_b128 v2, v[28:31] offset:{2*2040 - 512}
    s_mov_b64 exec, -1
    {le}:""")


def kg_expand(a):
    a.c("---- T4 expansion ----")
    a(f"""v_and_b32 v2, 255, v0
    v_lshlrev_b32 v2, 4, v2
    s_lshr_b32 s{S_T0}, s{S_WAVE}, 2
    s_mul_i32 s{S_T0}, s{S_T0}, {KC_CH}
    s_add_u32 s{S_T0}, s{S_T0}, {L_KC}
    v_add_u32 v2, s{S_T0}, v2
    ds_read_b128 v[20:23], v2
    ds_read_b64 v[24:25], v2 offset:16
    s_waitcnt lgkmcnt(0)""")
    for k in range(4):
        a(f"v_alignbit_b32 v{28+k}, v{21+k}, v{20+k}, 16")
    a(f"ds_write_b128 v2, v[28:31] offset:{KC_COPY}")
    for k in range(4):
        a(f"v_mov_b32 v{32+k}, v{21+k}")
    a(f"ds_write_b128 v2, v[32:35] offset:{2*KC_COPY}")
    for k in range(4):
        a(f"v_alignbit_b32 v{36+k}, v{22+k}, v{21+k}, 16")
    a(f"ds_write_b128 v2, v[36:39] offset:{3*KC_COPY}")


V_FA = 12
UR_LD = 88

def poll_a_issue(a):
    a(f"""v_and_b32 v13, 31, v1
    v_lshlrev_b32 v13, 2, v13
    s_lshr_b32 s{S_T0}, s{S_LIN}, 5
    s_lshl_b32 s{S_T0}, s{S_T0}, 7
    s_add_u32 s{S_Y0}, s{S_T0}, {WS_FA}
    buffer_load_dword v{V_FA}, v13, {sr(R_WS,4)}, s{S_Y0} offen {SC}""")


def poll_a_check_and_load_u(a):
    ok = a.label("aok"); lp = a.label("aspin")
    a(f"""s_mov_b32 s{S_CNT}, 0
    s_cmp_lg_u32 s{S_FB}, 0
    s_cbranch_scc1 {ok}
    {lp}:
    v_cmp_ne_u32 vcc, s{S_TAG}, v{V_FA}
    s_cbranch_vccz {ok}
    s_sleep 8
    buffer_load_dword v{V_FA}, v13, {sr(R_WS,4)}, s{S_Y0} offen {SC}
    s_add_u32 s{S_CNT}, s{S_CNT}, 1
    s_cmp_lt_u32 s{S_CNT}, {SPIN_MAX}
    s_waitcnt vmcnt(0)
    s_cbranch_scc1 {lp}
    s_mov_b32 s{S_TOF}, 1
    {ok}:
    v_lshlrev_b32 v2, 4, v0
    s_lshl_b32 s{S_T0}, s{S_LIN}, 13
    s_add_u32 s{S_T0}, s{S_T0}, {WS_UT}
    buffer_load_dwordx4 {vr(UR_LD,4)}, v2, {sr(R_WS,4)}, s{S_T0} offen {SC}""")


def cv_write_u(a):
    a(f"""v_lshrrev_b32 v2, 2, v0
    v_lshrrev_b32 v3, 8, v0
    v_lshl_add_u32 v2, v3, 5, v2
    v_mul_u32_u24 v2, 80, v2
    v_and_b32 v3, 3, v0
    v_lshl_add_u32 v2, v3, 4, v2
    v_add_u32 v2, {L_UR + 32*80}, v2
    ds_write_b128 v2, {vr(UR_LD,4)}""")


def to_record(a):
    sk = a.label("noto")
    a(f"""s_cmp_eq_u32 s{S_TOF}, 0
    s_cbranch_scc1 {sk}
    v_mov_b32 v2, {L_TO}
    v_mov_b32 v3, 1
    ds_write_b32 v2, v3
    {sk}:""")


CV_ACC = 48
CV_FR = 80

def cv_main(a):
    lp = a.label("cvloop")
    a.c("---- conv (waves 0..3): ch = w>>1, kk = w&1 ----")
    a(f"""v_and_b32 v2, 31, v1
    v_lshrrev_b32 v3, 5, v1
    v_mul_u32_u24 v4, 80, v2
    v_lshl_add_u32 v4, v3, 4, v4
    s_lshr_b32 s{S_T0}, s{S_WAVE}, 1
    s_and_b32 s{S_T1}, s{S_WAVE}, 1
    s_lshl_b32 s{S_T1}, s{S_T1}, 5
    s_mul_i32 s{S_T2}, s{S_T0}, {96*80}
    s_add_u32 s{S_T2}, s{S_T2}, s{S_T1}
    s_add_u32 s{S_T2}, s{S_T2}, {L_UR + 80}
    v_add_u32 v4, s{S_T2}, v4
    v_and_b32 v5, 3, v2
    v_xor_b32 v5, 3, v5
    v_mul_u32_u24 v5, {KC_COPY}, v5
    v_lshl_add_u32 v5, v3, 4, v5
    v_lshrrev_b32 v6, 2, v2
    v_lshlrev_b32 v6, 3, v6
    v_sub_u32 v5, v5, v6
    s_mul_i32 s{S_T2}, s{S_T0}, {KC_CH}
    s_add_u32 s{S_T2}, s{S_T2}, s{S_T1}
    s_add_u32 s{S_T2}, s{S_T2}, {L_KC + 2*2044 - 64*31 - 2048}
    v_add_u32 v5, s{S_T2}, v5""")

def cv_run(a):
    lp = a.label("cvloop")
    def rd(st, j):
        F = CV_FR + 16*st
        return [f"ds_read_b64 {vr(F,2)}, v5 offset:{64*j + 2048}",
                f"ds_read_b64 {vr(F+2,2)}, v5 offset:{64*j + 2048 + 8}",
                f"ds_read_b128 {vr(F+8,4)}, v4 offset:{80*j}",
                f"ds_read_b128 {vr(F+12,4)}, v4 offset:{80*j + 2560}",
                f"ds_read_b64 {vr(F+4,2)}, v5 offset:{64*j}",
                f"ds_read_b64 {vr(F+6,2)}, v5 offset:{64*j + 8}"]
    for x in rd(0, 0): a(x)
    for i in range(0, 32, 2):
        a(f"v_mov_b64 {vr(CV_ACC+i,2)}, 0")
    a(f"s_mov_b32 s{S_CNT}, 8\n.p2align 3\n{lp}:")
    for j in range(4):
        F = CV_FR + 16*(j & 1)
        R = rd((j + 1) & 1, j + 1)
        a(f"""s_waitcnt lgkmcnt(3)
        v_mfma_f32_32x32x16_bf16 {vr(CV_ACC,16)}, {vr(F,4)}, {vr(F+8,4)}, {vr(CV_ACC,16)}
        {R[0]}
        {R[1]}
        s_waitcnt lgkmcnt(4)
        v_mfma_f32_32x32x16_bf16 {vr(CV_ACC+16,16)}, {vr(F,4)}, {vr(F+12,4)}, {vr(CV_ACC+16,16)}
        {R[2]}
        {R[3]}
        s_waitcnt lgkmcnt(4)
        v_mfma_f32_32x32x16_bf16 {vr(CV_ACC+16,16)}, {vr(F+4,4)}, {vr(F+8,4)}, {vr(CV_ACC+16,16)}
        {R[4]}
        {R[5]}""")
    a(f"""v_add_u32 v4, 320, v4
    v_add_u32 v5, 256, v5
    s_sub_u32 s{S_CNT}, s{S_CNT}, 1
    s_cmp_lg_u32 s{S_CNT}, 0
    s_cbranch_scc1 {lp}
    s_lshl_b32 s{S_T0}, s{S_WAVE}, 13
    s_add_u32 s{S_T0}, s{S_T0}, {L_PB}
    v_add_u32 v2, s{S_T0}, v{V_L16}
    s_nop 4""")
    for q in range(8):
        a(f"ds_write_b128 v2, {vr(CV_ACC+4*q,4)} offset:{1024*q}")


def loader_b(a):
    ok = a.label("bok"); lp = a.label("bspin"); to = a.label("bto")
    a(f"""s_mov_b32 s{S_CNT}, 0
    s_mov_b32 s{S_T0}, {WS_FB}
    s_cmp_lg_u32 s{S_FB}, 0
    s_cbranch_scc1 {to}
    {lp}:
    buffer_load_dwordx4 v[4:7], v{V_L16}, {sr(R_WS,4)}, s{S_T0} offen {SC}
    s_add_u32 s{S_CNT}, s{S_CNT}, 1
    s_waitcnt vmcnt(0)
    v_xor_b32 v4, s{S_TAG}, v4
    v_xor_b32 v5, s{S_TAG}, v5
    v_xor_b32 v6, s{S_TAG}, v6
    v_xor_b32 v7, s{S_TAG}, v7
    v_or3_b32 v4, v4, v5, v6
    v_or_b32 v4, v4, v7
    v_cmp_ne_u32 vcc, 0, v4
    s_cbranch_vccz {ok}
    s_sleep 4
    s_cmp_lt_u32 s{S_CNT}, {SPIN_MAX}
    s_cbranch_scc1 {lp}
    s_mov_b32 s{S_TOF}, 1
    s_branch {to}
    {ok}:""")
    a.c("every workgroup has read the epoch word: advance it for the next launch")
    a(f"""v_mov_b32 v2, 0
    v_mov_b32 v3, s{S_TAG}
    s_mov_b32 s{S_T0}, {WS_EP}
    s_mov_b64 exec, 1
    buffer_store_dword v3, v2, {sr(R_WS,4)}, s{S_T0} offen {SC}
    s_mov_b64 exec, -1
    {to}:""")
    a.stamp("flagB")
    a(f"""s_lshl_b32 s{S_T0}, s{S_LIN}, 13
    s_mov_b32 m0, {L_QS}
    s_add_u32 s{S_T1}, s{S_T0}, 4096""")
    for j in range(4):
        a(f"buffer_load_dwordx4 v{V_L16}, {sr(R_WS,4)}, s{S_T0} offen offset:{1024*j} {SC} lds")
    a(f"""s_mov_b32 m0, {L_QS + 4096}
    s_mov_b32 s{S_T0}, {WS_KN}""")
    for j in range(4):
        a(f"buffer_load_dwordx4 v{V_L16}, {sr(R_WS,4)}, s{S_T1} offen offset:{1024*j} {SC} lds")
    a(f"""s_mov_b32 m0, {L_KNS}
    s_mov_b32 s{S_T1}, {WS_KV}
    buffer_load_dwordx4 v{V_L16}, {sr(R_WS,4)}, s{S_T0} offen {SC} lds
    s_mov_b32 s{S_T2}, {WS_KV + 65536}
    s_mov_b32 s{S_T3}, {L_KV}""")
    lp2 = a.label("kvl")
    a(f"""{lp2}:
    s_mov_b32 m0, s{S_T3}
    s_add_u32 s{S_T3}, s{S_T3}, 2048
    buffer_load_dwordx4 v{V_L16}, {sr(R_WS,4)}, s{S_T1} offen {SC} lds
    buffer_load_dwordx4 v{V_L16}, {sr(R_WS,4)}, s{S_T1} offen offset:1024 {SC} lds
    s_mov_b32 m0, s{S_T3}
    s_add_u32 s{S_T3}, s{S_T3}, 2048
    buffer_load_dwordx4 v{V_L16}, {sr(R_WS,4)}, s{S_T2} offen {SC} lds
    buffer_load_dwordx4 v{V_L16}, {sr(R_WS,4)}, s{S_T2} offen offset:1024 {SC} lds
    s_add_u32 s{S_T1}, s{S_T1}, 2048
    s_add_u32 s{S_T2}, s{S_T2}, 2048
    s_waitcnt vmcnt(40)
    s_cmp_lt_u32 s{S_T3}, {L_KV + EARLY*4096}
    s_cbranch_scc1 {lp2}
    s_waitcnt vmcnt(0)""")
    to_record(a)


A_S0, A_S1, A_O, A_C = 16, 32, 48, 64
A_K = 80
A_AF = 84
A_V0, A_V1 = 88, 96
A_Q0, A_Q1 = 104, 108
A_ACC = 112
A_W = 128
A_IDX, A_IDX2, A_ADDR = 12, 13, 14
A_M1 = 11
A_Y = 252
A_YA = 251
BOUND_T = 32.0


def cv_epilogue(a):
    a.c("---- conv epilogue: wave v: (I = v>>2, q = v&3); lane (i, h): t0 = 1024 I + 32 i + 8 q + 4 h ----")
    a(f"""v_lshlrev_b32 v2, 4, v0
    v_add_u32 v2, {L_PB}, v2
    v_mov_b32 v6, {L_TO}
    ds_read_b32 v6, v6
    ds_read_b128 v[20:23], v2
    ds_read_b128 v[24:27], v2 offset:8192
    ds_read_b128 v[28:31], v2 offset:16384
    ds_read_b128 v[32:35], v2 offset:24576
    v_and_b32 v3, 31, v1
    v_lshrrev_b32 v4, 5, v1
    v_mul_u32_u24 v5, 80, v3
    v_lshl_add_u32 v5, v4, 3, v5
    s_lshr_b32 s{S_T0}, s{S_WAVE}, 2
    s_and_b32 s{S_T1}, s{S_WAVE}, 3
    s_mul_i32 s{S_T2}, s{S_T0}, {32*80}
    s_lshl_b32 s{S_T3}, s{S_T1}, 4
    s_add_u32 s{S_T2}, s{S_T2}, s{S_T3}
    s_add_u32 s{S_T2}, s{S_T2}, {L_UR + 32*80}
    v_add_u32 v5, s{S_T2}, v5
    ds_read_b64 v[36:37], v5
    ds_read_b64 v[38:39], v5 offset:{96*80}
    s_lshl_b32 s{S_T2}, s{S_T1}, 10
    s_add_u32 s{S_T2}, s{S_T2}, {L_QS}
    v_add_u32 v2, s{S_T2}, v{V_L16}
    v_lshlrev_b32 v5, 3, v1
    ds_read_b128 {vr(A_Q0,4)}, v2
    ds_read_b128 {vr(A_Q1,4)}, v2 offset:4096
    v_add_u32 v5, {L_KNS}, v5
    ds_read_b64 v[8:9], v5
    v_lshlrev_b32 v3, 16, v3
    v_lshl_add_u32 v{A_YA}, v4, 13, v3
    s_lshl_b32 s{S_T0}, s{S_T0}, 21
    s_lshl_b32 s{S_T1}, s{S_T1}, 14
    s_add_u32 s{S_T0}, s{S_T0}, s{S_T1}
    s_lshl_b32 s{S_T1}, s{S_LIN}, 2
    s_add_u32 s{S_Y0}, s{S_T0}, s{S_T1}
    s_lshl_b32 s{S_K0}, s{S_DS}, 16
    s_and_b32 s{S_K1}, s{S_DS}, 0xffff0000
    s_waitcnt lgkmcnt(5)
    v_readfirstlane_b32 s{S_T0}, v6
    v_pk_add_f32 v[20:21], v[20:21], v[24:25]
    v_pk_add_f32 v[22:23], v[22:23], v[26:27]
    v_pk_add_f32 v[28:29], v[28:29], v[32:33]
    v_pk_add_f32 v[30:31], v[30:31], v[34:35]
    s_cmp_lg_u32 s{S_T0}, 0
    s_cbranch_scc1 L_fallback
    s_waitcnt lgkmcnt(0)
    s_barrier""")
    for c, (U, Y, K) in enumerate(((36, 20, S_K0), (38, 28, S_K1))):
        a(f"""v_lshlrev_b32 v24, 16, v{U}
        v_and_b32 v25, 0xffff0000, v{U}
        v_lshlrev_b32 v26, 16, v{U+1}
        v_and_b32 v27, 0xffff0000, v{U+1}
        v_fmac_f32 v{Y}, s{K}, v24
        v_fmac_f32 v{Y+1}, s{K}, v25
        v_fmac_f32 v{Y+2}, s{K}, v26
        v_fmac_f32 v{Y+3}, s{K}, v27""")
    for e in range(4):
        a(f"v_cvt_pk_bf16_f32 v{A_Y+e}, v{20+e}, v{28+e}")


def at_consts(a):
    a(f"""v_mov_b32 v{A_IDX}, 0xdddddddd
    v_and_b32 v2, 1, v1
    v_mul_u32_u24 v2, 0xaaaa, v2
    v_add_u32 v{A_IDX2}, 0x4444, v2
    s_mov_b32 s{S_VMASK}, 0xffff
    s_mov_b32 s{S_VMASK+1}, 0xffff
    s_lshr_b32 s{S_KAP}, s{S_WAVE}, 2
    v_and_b32 v2, 27, v1
    v_cmp_eq_u32 vcc, 16, v2
    v_mov_b32 v3, 0x3f803f80
    s_lshl_b32 s{S_T0}, s{S_KAP}, 11
    v_cndmask_b32 v2, 0, v3, vcc
    v_add_u32 v{A_ADDR}, s{S_T0}, v{V_L16}
    v_mov_b32 v3, v2""")
    for i in range(0, 16, 2):
        a(f"v_mov_b64 {vr(A_V0+i,2)}, v[2:3]")
    a(f"""ds_read_b128 {vr(A_K,4)}, v{A_ADDR}
    s_mov_b64 exec, {sr(S_VMASK,2)}
    ds_read_b128 {vr(A_V0,4)}, v{A_ADDR} offset:1024
    ds_read_b128 {vr(A_V0+4,4)}, v{A_ADDR} offset:1280
    s_mov_b64 exec, -1""")
    for i in range(0, 16, 2):
        a(f"v_mov_b64 {vr(A_ACC+i,2)}, 0")
    for i in range(0, 10, 2):
        a(f"v_mov_b64 {vr(A_O+i,2)}, 0")


def at_shift(a):
    a(f"""v_max_f32 v9, v8, v9
    v_dot2_f32_bf16 v2, v{A_Q0}, v{A_Q0}, 0
    v_dot2_f32_bf16 v4, v{A_Q1}, v{A_Q1}, 0
    v_max_f32_dpp v9, v9, v9 row_ror:8 row_mask:0xf bank_mask:0xf
    v_dot2_f32_bf16 v2, v{A_Q0+1}, v{A_Q0+1}, v2
    v_dot2_f32_bf16 v4, v{A_Q1+1}, v{A_Q1+1}, v4
    v_max_f32_dpp v9, v9, v9 row_ror:4 row_mask:0xf bank_mask:0xf
    v_dot2_f32_bf16 v2, v{A_Q0+2}, v{A_Q0+2}, v2
    v_dot2_f32_bf16 v4, v{A_Q1+2}, v{A_Q1+2}, v4
    v_max_f32_dpp v9, v9, v9 row_ror:2 row_mask:0xf bank_mask:0xf
    v_dot2_f32_bf16 v2, v{A_Q0+3}, v{A_Q0+3}, v2
    v_dot2_f32_bf16 v4, v{A_Q1+3}, v{A_Q1+3}, v4
    v_max_f32_dpp v9, v9, v9 row_ror:1 row_mask:0xf bank_mask:0xf
    s_nop 0
    v_mov_b32 v8, v9
    v_mov_b32 v3, v2
    v_mov_b32 v5, v4
    v_permlane16_swap_b32 v8, v9
    v_permlane32_swap_b32 v2, v3
    v_permlane32_swap_b32 v4, v5
    v_max_f32 v9, v8, v9
    v_add_f32 v2, v2, v3
    v_mov_b32 v8, v9
    v_add_f32 v4, v4, v5
    s_nop 0
    v_permlane32_swap_b32 v8, v9
    s_nop 1
    v_max_f32 v9, v8, v9
    v_mul_f32 v2, v2, v9
    v_mul_f32 v4, v4, v9
    v_sqrt_f32 v2, v2
    v_sqrt_f32 v4, v4
    v_mul_f32 v2, {f2u(-1.02):#x}, v2
    v_mul_f32 v{A_M1}, {f2u(-1.02):#x}, v4
    v_min_f32 v3, v2, v{A_M1}
    v_cmp_o_f32 s[{S_SAVE}:{S_SAVE+1}], v2, v{A_M1}
    v_cmp_le_f32 vcc, {f2u(-BOUND_T):#x}, v3
    s_and_b64 vcc, vcc, s[{S_SAVE}:{S_SAVE+1}]
    s_cmp_eq_u64 vcc, exec
    s_cbranch_scc0 L_slow
    L_slow_done:
    v_mov_b32 v3, v2""")
    for i in range(0, 16, 2):
        a(f"v_mov_b64 {vr(A_C+i,2)}, v[2:3]")


def at_slow(a):
    lp = a.label("mxl")
    a(f"""L_slow:
    s_mov_b32 s{S_T0}, {WS_KV}
    s_mov_b32 s{S_CNT}, 64
    v_mov_b32 v2, 0xff800000
    v_mov_b32 v{A_M1}, 0xff800000
    {lp}:
    buffer_load_dwordx4 v[4:7], v{V_L16}, {sr(R_WS,4)}, s{S_T0} offen {SC}
    s_add_u32 s{S_T0}, s{S_T0}, 2048
    s_waitcnt vmcnt(0)
    v_mfma_f32_32x32x16_bf16 {vr(A_S0,16)}, v[4:7], {vr(A_Q0,4)}, 0
    v_mfma_f32_32x32x16_bf16 {vr(A_S1,16)}, v[4:7], {vr(A_Q1,4)}, 0
    s_nop 15""")
    for i in range(0, 16, 2):
        a(f"v_max3_f32 v2, v2, v{A_S0+i}, v{A_S0+i+1}")
    for i in range(0, 16, 2):
        a(f"v_max3_f32 v{A_M1}, v{A_M1}, v{A_S1+i}, v{A_S1+i+1}")
    a(f"""s_sub_u32 s{S_CNT}, s{S_CNT}, 1
    s_cmp_lg_u32 s{S_CNT}, 0
    s_cbranch_scc1 {lp}
    v_mov_b32 v3, v2
    v_mov_b32 v4, v{A_M1}
    s_nop 1
    v_permlane32_swap_b32 v2, v3
    v_permlane32_swap_b32 v{A_M1}, v4
    s_nop 1
    v_max_f32 v2, v2, v3
    v_max_f32 v{A_M1}, v{A_M1}, v4
    v_sub_f32 v2, 0, v2
    v_sub_f32 v{A_M1}, 0, v{A_M1}
    s_branch L_slow_done""")


def flush_ops():
    return [f"""s_mul_i32 s{S_T0}, s{S_WAVE}, 2304
    s_add_u32 s{S_T0}, s{S_T0}, {L_XB}
    v_add_u32 v2, s{S_T0}, v{V_L16}
    v_lshl_add_u32 v3, v1, 2, s{S_T0}""",
    f"""ds_write_b128 v2, {vr(A_O,4)}
    ds_write_b128 v2, {vr(A_O+4,4)} offset:1024
    ds_write_b32 v3, v{A_O+8} offset:2048"""]


def finish_ops(rnd):
    p1 = f"""s_and_b32 s{S_T0}, s{S_WAVE}, 3
    s_mul_i32 s{S_T1}, s{S_T0}, 2304
    s_add_u32 s{S_T1}, s{S_T1}, {L_XB}
    s_lshl_b32 s{S_T2}, s{S_KAP}, 10
    s_add_u32 s{S_T2}, s{S_T2}, s{S_T1}
    v_add_u32 v2, s{S_T2}, v{V_L16}
    v_lshl_add_u32 v3, v1, 2, s{S_T1}
    ds_read_b32 v8, v3 offset:2048
    ds_read_b32 v9, v3 offset:{2048 + 4*2304}
    ds_read_b128 v[4:7], v2
    ds_read_b128 {vr(A_AF,4)}, v2 offset:{4*2304}
    v_and_b32 v2, 31, v1
    v_lshlrev_b32 v2, 5, v2
    v_lshrrev_b32 v3, 5, v1
    v_lshl_add_u32 v2, v3, 4, v2
    s_lshl_b32 s{S_T0}, s{S_T0}, 10
    s_lshl_b32 s{S_T1}, s{S_KAP}, 3
    s_add_u32 s{S_T0}, s{S_T0}, s{S_T1}
    s_add_u32 s{S_T0}, s{S_T0}, {L_OA + rnd*4096}
    v_add_u32 v2, s{S_T0}, v2"""
    p2 = f"""v_add_f32 v8, v8, v9
    v_rcp_f32 v8, v8
    v_pk_add_f32 v[4:5], v[4:5], {vr(A_AF,2)}
    v_pk_add_f32 v[6:7], v[6:7], {vr(A_AF+2,2)}
    v_pk_mul_f32 v[4:5], v[4:5], v[8:9] op_sel_hi:[1,0]
    v_pk_mul_f32 v[6:7], v[6:7], v[8:9] op_sel_hi:[1,0]
    v_cvt_pk_bf16_f32 v4, v4, v5
    v_cvt_pk_bf16_f32 v5, v6, v7
    ds_write_b64 v2, v[4:5]"""
    return p1, p2


def w_load(i):
    t4, half, j = i // 8, (i // 4) % 2, i % 4
    r = A_W + t4*32 + half*16 + j*4
    s = f"buffer_load_dwordx4 {vr(r,4)}, v{V_L16}, {sr(R_WS,4)}, s{S_W0} offen offset:{1024*j} {SC}"
    if j == 3:
        s += f"\ns_add_u32 s{S_W0}, s{S_W0}, {4096 if half == 0 else 65536 - 4096}"
    return s


def attention(a):
    NS = 64
    ins = {s: {"A": [], "B": [], "C": [], "Z": []} for s in range(NS + 1)}
    a.c("late KV source/dest: wave v: step = 16 + 2j + (v>>2), kappa = (v>>1)&1, part = v&1")
    a(f"""s_lshr_b32 s{S_T0}, s{S_WAVE}, 2
    s_lshl_b32 s{S_T0}, s{S_T0}, 11
    s_bfe_u32 s{S_T1}, s{S_WAVE}, 0x10001
    s_lshl_b32 s{S_T1}, s{S_T1}, 16
    s_add_u32 s{S_T0}, s{S_T0}, s{S_T1}
    s_and_b32 s{S_T1}, s{S_WAVE}, 1
    s_lshl_b32 s{S_T1}, s{S_T1}, 10
    s_add_u32 s{S_T0}, s{S_T0}, s{S_T1}
    s_add_u32 s{S_W1}, s{S_T0}, {WS_KV + EARLY*2048}
    s_lshl_b32 s{S_M0}, s{S_WAVE}, 10
    s_lshl_b32 s{S_W0}, s{S_WAVE}, 13
    s_add_u32 s{S_W0}, s{S_W0}, {WS_WT}""")
    for j in range(8):
        ins[j]["B"].append(f"""s_add_u32 m0, s{S_M0}, {L_KV + EARLY*4096 + j*8192}
        s_nop 0
        buffer_load_dwordx4 v{V_L16}, {sr(R_WS,4)}, s{S_W1} offen {SC} lds
        s_add_u32 s{S_W1}, s{S_W1}, 4096""")
    for e in range(4):
        ins[8 + e]["B"].append(f"buffer_store_dword v{A_Y+e}, v{A_YA}, {sr(R_OUT,4)}, s{S_Y0} offen offset:{2048*(e&1)}"
                               + (f"\ns_add_u32 s{S_Y0}, s{S_Y0}, 4096" if e == 1 else ""))
    for i in range(32):
        ins[3 + i]["C"].append(w_load(i))
    ins[13]["A"].append("s_waitcnt vmcnt(10)\ns_barrier")
    cw = [f"v_mov_b32 v2, v{A_M1}\nv_mov_b32 v3, v{A_M1}"] + [f"v_mov_b64 {vr(A_C+i,2)}, v[2:3]" for i in range(0, 16, 2)]
    ins[30]["C"].append("\n".join(cw))
    fl = flush_ops()
    ins[32]["A"].append(fl[0])
    ins[32]["C"].append(fl[1] + "\n" + "\n".join(f"v_mov_b64 {vr(A_O+i,2)}, 0" for i in range(0, 10, 2)))
    f1, f2 = finish_ops(0)
    ins[34]["A"].append("s_barrier\n" + f1)
    ins[34]["C"].append(f2)
    ins[36]["A"].append(f"""s_waitcnt vmcnt(0)
    s_barrier
    v_add_u32 v2, {L_OA}, v{V_L16}
    ds_read_b128 {vr(A_AF,4)}, v2
    ds_read_b128 v[4:7], v2 offset:1024""")
    for t4 in range(4):
        F = A_AF if t4 % 2 == 0 else 4
        sm = [f"v_smfmac_f32_16x16x64_bf16 {vr(A_ACC+4*ct,4)}, {vr(F,4)}, {vr(A_W + t4*32 + ct*8, 8)}, v{A_IDX2}" for ct in range(4)]
        ins[36 + t4]["B"].append(sm[0] + "\n" + sm[1])
        ins[36 + t4]["C"].append(sm[2] + "\n" + sm[3])
        if t4 + 2 < 4:
            ins[37 + t4]["A"].append(f"ds_read_b128 {vr(F,4)}, v2 offset:{1024*(t4+2)}")
    k = 0
    for s in range(38, 62):
        n = 2 if (s - 38) % 3 == 0 else 1
        for q in range(n):
            ins[s]["A" if (n == 2 and q == 0) else "Z"].append(w_load(k)); k += 1
    assert k == 32

    def lds_count(txt):
        return sum(1 for ln in txt.split("\n") if ln.strip().startswith("ds_"))

    a.c("---- prime ----")
    a(f"""s_waitcnt lgkmcnt(2)
    v_mfma_f32_32x32x16_bf16 {vr(A_S0,16)}, {vr(A_K,4)}, {vr(A_Q0,4)}, {vr(A_C,16)}
    ds_read_b128 {vr(A_K,4)}, v{A_ADDR} offset:4096
    s_nop 10
    v_exp_f32 v{A_S0}, v{A_S0}
    v_exp_f32 v{A_S0+1}, v{A_S0+1}""")
    a.stamp("r0start")
    a(".p2align 3")
    for s in range(NS):
        S, Sn = (A_S0, A_S1) if s % 2 == 0 else (A_S1, A_S0)
        Vc, Vn = (A_V0, A_V1) if s % 2 == 0 else (A_V1, A_V0)
        last = s == NS - 1
        def E(R, i):
            if i == OPT["prio_lo"]: a("s_setprio 0")
            if i == OPT["prio_hi"]: a("s_setprio 1")
            a(f"v_exp_f32 v{R+i}, v{R+i}")
        def off(step):
            return (step % 16) * 4096
        a.c(f"step {s}")
        nlds = 0
        if (s + 1) % 16 == 0 and not last:
            a(f"v_mov_b32 v{A_ADDR}, v0")
        if not last:
            a(f"""s_mov_b64 exec, {sr(S_VMASK,2)}
            ds_read_b128 {vr(Vn,4)}, v{A_ADDR} offset:{off(s+1) + 1024}
            ds_read_b128 {vr(Vn+4,4)}, v{A_ADDR} offset:{off(s+1) + 1280}
            s_mov_b64 exec, -1""")
            nlds = 2
        E(S, 2); E(S, 3)
        a(f"s_waitcnt lgkmcnt({nlds})")
        for x in ins[s]["A"]: a(x)
        E(S, 4)
        if not last:
            Q = A_Q0 if s + 1 < 32 else A_Q1
            a(f"v_mfma_f32_32x32x16_bf16 {vr(Sn,16)}, {vr(A_K,4)}, {vr(Q,4)}, {vr(A_C,16)}")
            if s + 2 < NS:
                if (s + 2) % 16 == 0:
                    a(f"v_xor_b32 v0, 0x10000, v{A_ADDR}")
                    a(f"ds_read_b128 {vr(A_K,4)}, v0 offset:{off(s+2)}")
                else:
                    a(f"ds_read_b128 {vr(A_K,4)}, v{A_ADDR} offset:{off(s+2)}")
        for i in range(5, 9): E(S, i)
        xb = "\n".join(ins[s]["B"])
        if "v_smfmac_f32_16x16x64" in xb and lds_count("\n".join(ins[s]["A"])):
            a("s_waitcnt lgkmcnt(1)")
        for x in ins[s]["B"]: a(x)
        E(S, 9); E(S, 10)
        pvlo = f"v_smfmac_f32_32x32x32_bf16 {vr(A_O,16)}, {vr(Vc,4)}, {vr(S,8)}, v{A_IDX}"
        if s != 32: a(pvlo)
        for i in range(11, 14): E(S, i)
        if s == 34: a("s_waitcnt lgkmcnt(1)")
        for x in ins[s]["C"]: a(x)
        E(S, 14); E(S, 15)
        if s == 32: a(pvlo)
        for x in ins[s]["Z"]: a(x)
        if not last:
            E(Sn, 0); E(Sn, 1)
        else:
            a(fl[0])
        a(f"v_smfmac_f32_32x32x32_bf16 {vr(A_O,16)}, {vr(Vc+4,4)}, {vr(S+8,8)}, v{A_IDX}")
        if s in (15, 31, 47): a.stamp(f"step{s}")
    a.stamp("r1end")
    a("s_setprio 0\ns_nop 10")
    a(fl[1])
    f1, f2 = finish_ops(1)
    a("s_waitcnt lgkmcnt(0)\ns_barrier")
    a(f1)
    a("s_waitcnt lgkmcnt(0)")
    a(f2)
    a(f"""v_add_u32 v2, {L_OA + 4096}, v{V_L16}
    s_waitcnt vmcnt(0) lgkmcnt(0)
    s_barrier""")
    a.stamp("fin1")
    FR = [A_AF, 4, A_S0, A_S0 + 4]
    for t4 in range(4):
        a(f"ds_read_b128 {vr(FR[t4],4)}, v2 offset:{1024*t4}")
    a(f"""v_lshrrev_b32 v2, 4, v1
    v_lshlrev_b32 v2, 12, v2
    v_and_b32 v3, 15, v1
    v_lshl_add_u32 v2, v3, 3, v2
    s_lshl_b32 s{S_T0}, s{S_LIN}, 14
    s_lshl_b32 s{S_T1}, s{S_WAVE}, 7
    s_add_u32 s{S_T0}, s{S_T0}, s{S_T1}""")
    for t4 in range(4):
        a(f"s_waitcnt lgkmcnt({3 - t4})")
        for ct in range(4):
            a(f"v_smfmac_f32_16x16x64_bf16 {vr(A_ACC+4*ct,4)}, {vr(FR[t4],4)}, {vr(A_W + t4*32 + ct*8, 8)}, v{A_IDX2}")
    a("s_nop 4")
    for ct in range(4):
        a(f"""v_add_f32 v{A_ACC+4*ct}, v{A_ACC+4*ct}, v{A_ACC+4*ct+1}
        v_add_f32 v{A_ACC+4*ct+2}, v{A_ACC+4*ct+2}, v{A_ACC+4*ct+3}""")
    a(f"""v_cvt_pk_bf16_f32 v4, v{A_ACC}, v{A_ACC+4}
    v_cvt_pk_bf16_f32 v5, v{A_ACC+8}, v{A_ACC+12}
    v_cvt_pk_bf16_f32 v6, v{A_ACC+2}, v{A_ACC+6}
    v_cvt_pk_bf16_f32 v7, v{A_ACC+10}, v{A_ACC+14}
    buffer_store_dwordx2 v[4:5], v2, {sr(R_OUT,4)}, s{S_T0} offen offset:1024
    buffer_store_dwordx2 v[6:7], v2, {sr(R_OUT,4)}, s{S_T0} offen offset:3072""")


def build():
    a = Asm()
    if OPT["diag"]:
        a(f"v_mov_b32 v{V_STAMP}, 0")
    a.stamp("rt0", True); a.stamp("start")
    prologue(a)
    a.stamp("kernarg")
    a.c("epoch word -> this launch's hand-off tag; per-channel scalars")
    a(f"""v_mov_b32 v2, 0
    s_mov_b32 s{S_T0}, {WS_EP}
    buffer_load_dword v{V_EP}, v2, {sr(R_WS,4)}, s{S_T0} offen {SC}
    s_lshl_b32 s{S_T0}, s{S_LIN}, 2
    s_load_dword s{S_DT}, {sr(S_LDT,2)}, s{S_T0}
    s_load_dword s{S_DS}, {sr(S_DSK,2)}, s{S_T0}""")
    a("L_phase1:")
    task_setup(a)
    a(f"""s_cmp_ge_u32 s{S_WAVE}, 4
    s_cbranch_scc1 L_lw""")
    s_waves(a)
    a("s_branch L_join1\nL_lw:")
    l_waves(a)
    a("L_join1:")
    a.stamp("p1a")
    a(f"""v_readfirstlane_b32 s{S_TAG}, v{V_EP}""")
    kg_mfma(a)
    a(f"""s_mul_i32 s{S_TAG}, s{S_TAG}, 0x0019660d
    s_add_u32 s{S_TAG}, s{S_TAG}, 0x3c6ef35f""")
    if OPT["force_fb"]:
        a(f"s_add_u32 s{S_TAG}, s{S_TAG}, s2")
    a("s_waitcnt lgkmcnt(0)\ns_barrier")
    a.stamp("bar1")
    kg_mfma_run(a, g_addr)
    flag_store(a, WS_FA, 0)
    a.stamp("kgmfma")
    g_compute(a)
    a.stamp("gemm")
    poll_a_issue(a)
    g_epilogue(a)
    a("s_barrier")
    a.c("fallback mode: this workgroup produces every task's output itself")
    a(f"""s_cmp_eq_u32 s{S_FB}, 0
    s_cbranch_scc1 L_p1done
    s_add_u32 s{S_TASK}, s{S_TASK}, 1
    s_cmp_lt_u32 s{S_TASK}, 256
    s_waitcnt vmcnt(0)
    s_cbranch_scc1 L_phase1
    s_barrier
    L_p1done:""")
    kg_copy0(a)
    a("s_waitcnt vmcnt(0)")
    a.stamp("stores")
    poll_a_check_and_load_u(a)
    a("s_waitcnt lgkmcnt(0)\ns_barrier")
    flag_store(a, WS_FB, 7)
    a.stamp("copy0")
    kg_expand(a)
    to_record(a)
    cv_main(a)
    a(f"""s_lshl_b32 s{S_T0}, s{S_FB}, 4
    s_add_u32 s{S_T0}, s{S_T0}, s{S_WAVE}
    s_cmp_eq_u32 s{S_T0}, 7
    s_waitcnt vmcnt(1)
    s_cbranch_scc1 L_uok
    s_waitcnt vmcnt(0)
    L_uok:""")
    cv_write_u(a)
    a("s_waitcnt lgkmcnt(0)\ns_barrier")
    a.stamp("expand")
    a(f"""s_cmp_ge_u32 s{S_WAVE}, 4
    s_cbranch_scc1 L_nocv""")
    cv_run(a)
    a(f"""s_branch L_cvdone
    L_nocv:
    s_cmp_lg_u32 s{S_WAVE}, 7
    s_cbranch_scc1 L_cvdone""")
    loader_b(a)
    a("L_cvdone:")
    a.stamp("conv")
    a("s_waitcnt lgkmcnt(0)\ns_barrier")
    a.stamp("convbar")
    cv_epilogue(a)
    at_consts(a)
    at_shift(a)
    attention(a)
    if OPT["diag"]: a("s_waitcnt vmcnt(0)")
    a.stamp("stored"); a.stamp("rt1", True)
    a.stamp_dump()
    a("L_end:\ns_endpgm")
    at_slow(a)
    a(f"""L_fallback:
    s_mov_b32 s{S_FB}, 1
    s_mov_b32 s{S_TOF}, 0
    s_mov_b32 s{S_TASK}, 0
    s_waitcnt vmcnt(0) lgkmcnt(0)
    s_barrier
    s_branch L_phase1
    L_code_end:""")

    hdr = open(f"cdna_kernels/{NAME}.s.ref").read().split("; Override launch")[0]
    kn = NAME + "_kernel"
    out = hdr
    out += f"; @launch grid=(256,1,1) block=(512,1,1) lds={LDS_BYTES}\n"
    out += '.amdgcn_target "amdgcn-amd-amdhsa--gfx950"\n.text\n'
    out += f".globl {kn}\n.p2align 8\n.type {kn},@function\n{kn}:\n" + a.text()
    out += f""".section .rodata,"a"
.p2align 6
.amdhsa_kernel {kn}
  .amdhsa_next_free_vgpr 256
  .amdhsa_next_free_sgpr 96
  .amdhsa_accum_offset 256
  .amdhsa_group_segment_fixed_size 0
  .amdhsa_kernarg_size 136
  .amdhsa_user_sgpr_count 2
  .amdhsa_user_sgpr_kernarg_segment_ptr 1
  .amdhsa_system_sgpr_workgroup_id_x 1
.end_amdhsa_kernel
"""
    return out


if __name__ == "__main__":
    dst = sys.argv[1] if len(sys.argv) > 1 else f"cdna_kernels/{NAME}.s"
    for o in sys.argv[2:]:
        k, _, v = o.partition("=")
        OPT[k] = (int(v) if v.lstrip("-").isdigit() else v) if v else True
    txt = build()
    open(dst, "w").write(txt)
    print("wrote", dst, len(txt), "bytes")
```

```python
import sys, struct, math

NAME = "concat_heads__ssm_conv_s4__grouped_kv_mqa__prompt"
OPT = dict(diag=False, force_fb=False, prio_lo=0, prio_hi=5, prefetch=1, sleep=4, delay=24, early=8)

def f2u(x):
    return struct.unpack("<I", struct.pack("<f", x))[0]

WS_QF = 0
WS_UT = 2 << 20
WS_WT = 4 << 20
WS_KV = WS_WT + (512 << 10)
WS_KN = WS_KV + (128 << 10)
WS_FA = WS_KN + 1024
WS_FB = WS_FA + 1024
WS_EP = WS_FB + 1024
WS_SIZE = WS_EP + 1024
WS_DIAG = 8 << 20

L_G = 0
L_XY = 65536
XY_ROW = 544
XY_CH = 32 * XY_ROW
L_X = L_XY
L_Y = L_XY + 2 * XY_CH
L_WKV = 135168
L_UTILE = 151552
L_WOT = 159744
KC_COPY = 4160
KC_CH = 4 * KC_COPY
L_QS = 65536
L_KNS = L_QS + 8192
L_TO = L_KNS + 1024
L_UR = 82432
L_KC = 97792
L_PB = 131072
L_KV = 0
L_XB = 131072
L_OA = L_XB + 8 * 2304
LDS_BYTES = 163840

S_U, S_ARE, S_AIM, S_BRE, S_BIM, S_CRE, S_CIM, S_LDT = 16, 18, 20, 22, 24, 26, 28, 30
S_DSK, S_X, S_WQ, S_WK, S_WV, S_WO, S_OUT, S_DBG, S_WS = 32, 34, 36, 38, 40, 42, 44, 46, 48
R_WS, R_OUT, R_X, R_WQ, R_U, R_WO, R_WKV = 52, 56, 60, 64, 68, 72, 76
S_TASK = 3
S_LIN, S_WAVE, S_RB, S_CB, S_C0 = 4, 5, 6, 7, 8
S_T0, S_T1, S_T2, S_T3 = 9, 10, 11, 12
S_CNT = 13
S_VMASK = 14
S_FB = 50
S_TAG = 51
S_PC = 80
S_SAVE = 82
S_DT, S_DS = 84, 85
S_K0, S_K1 = 86, 87
S_W0, S_W1 = 88, 89
S_KAP = 90
S_TOF = 91
S_M0 = 92
S_Y0 = 93
S_XO, S_WO_ = 98, 99
SC = "sc1"
SPIN_MAX = 20000

V_STAMP = 10
V_EP = 11
A_M1 = 11
A_IDX, A_IDX2, A_ADDR, V_L16 = 12, 13, 14, 15
A_S0, A_S1, A_O, A_C = 16, 32, 48, 64
A_K, A_AF, A_V0, A_V1, A_Q0, A_Q1, A_ACC, A_W = 80, 84, 88, 96, 104, 108, 112, 128
A_YA, A_Y = 251, 252
(GX, GW, GA, GB0, GB1, GKX0, GKX1, GKW, KGX, KGY, XYW, UA, US, QS, C0A, SL0, SL1, SL2, SL3,
 ZA, EXA, URL, URW, CVB, CVA, PBW, PBR, EPU, QRD, KNR, FAO, KVS) = range(16, 48)
V_FA = 64
G_ACC, G_ACCK, G_ACCV, G_FR = 128, 136, 140, 144
KG_D = 184
UR_LD = 188
KGP = 192
KG = 200
CV_ACC = 128
CV_FR = 192
KV_WAVE = 3
BOUND_T = 32.0


def vr(a, n): return f"v[{a}:{a+n-1}]"
def sr(a, n): return f"s[{a}:{a+n-1}]"


class Asm:
    def __init__(self):
        self.lines = []
        self.uid = 0
        self.stamp_names = []
        self.nl = 0; self.dl = 0
        self.nv = 0; self.dv = 0
    def __call__(self, s):
        for ln in s.split("\n"):
            ln = ln.strip()
            if ln:
                self.lines.append(("" if ln.endswith(":") else "    ") + ln)
    def c(self, s):
        self.lines.append("    ; " + s)
    def label(self, base):
        self.uid += 1
        return f"L_{base}_{self.uid}"
    def text(self):
        return "\n".join(self.lines) + "\n"
    def reset(self):
        self.nl = self.dl = self.nv = self.dv = 0
    def lds(self, s):
        self(s); self.nl += 1; return self.nl
    def vm(self, s):
        self(s); self.nv += 1; return self.nv
    def wait_l(self, tok):
        if tok > self.dl:
            n = min(self.nl - tok, 15)
            self(f"s_waitcnt lgkmcnt({n})"); self.dl = self.nl - n
    def wait_v(self, tok):
        if tok > self.dv:
            n = min(self.nv - tok, 63)
            self(f"s_waitcnt vmcnt({n})"); self.dv = self.nv - n
    def stamp(self, name):
        if not OPT["diag"]:
            return
        if name in self.stamp_names:
            i = self.stamp_names.index(name)
        else:
            i = len(self.stamp_names); self.stamp_names.append(name)
        assert i < 32
        self(f"""s_memtime s[94:95]
        s_memrealtime s[96:97]
        s_waitcnt lgkmcnt(0)
        v_writelane_b32 v{V_STAMP}, s94, {i}
        v_writelane_b32 v{V_STAMP}, s96, {i+32}""")
    def stamp_dump(self):
        if not OPT["diag"]:
            return
        self(f"""v_lshlrev_b32 v3, 2, v1
        s_lshl_b32 s{S_T0}, s2, 3
        s_add_u32 s{S_T0}, s{S_T0}, s{S_WAVE}
        s_lshl_b32 s{S_T0}, s{S_T0}, 8
        s_add_u32 s{S_T0}, s{S_T0}, {WS_DIAG}
        s_mov_b32 s{R_WS+2}, {WS_DIAG + (4<<20)}
        buffer_store_dword v{V_STAMP}, v3, {sr(R_WS,4)}, s{S_T0} offen""")
        self.lines.append(f"; STAMPS 0 " + ",".join(self.stamp_names))


def srd(a, R, P, size):
    a(f"""s_mov_b32 s{R}, s{P}
    s_mov_b32 s{R+1}, s{P+1}
    s_mov_b32 s{R+2}, {size:#x}
    s_mov_b32 s{R+3}, 0x00020000""")


def SEL(lo, hi):
    return (2*lo) | ((2*lo+1) << 8) | ((2*hi) << 16) | ((2*hi+1) << 24)


def prologue(a):
    a(f"""s_cmp_ge_u32 s2, 256
    s_cbranch_scc1 L_end
    s_load_dwordx16 s[16:31], s[0:1], 0
    s_load_dwordx16 s[32:47], s[0:1], 64
    s_load_dwordx2 s[48:49], s[0:1], 128""")
    if OPT["prefetch"]:
        a.c("pull the kernel's own code into L2 (instruction fetch is slow from cold memory); 1/32 per workgroup")
        sk = a.label("nopf")
        a(f"""s_getpc_b64 {sr(S_PC,2)}
        L_pc_ref:
        v_sub_u32 v2, 511, v0
        s_lshr_b32 s{S_T0}, s2, 3
        v_lshl_add_u32 v2, v2, 5, s{S_T0}
        v_lshlrev_b32 v2, 7, v2
        v_cmp_gt_u32 vcc, (L_code_end - L_pc_ref), v2
        s_and_saveexec_b64 {sr(S_SAVE,2)}, vcc
        s_cbranch_execz {sk}
        global_load_dword v255, v2, {sr(S_PC,2)}
        {sk}:
        s_mov_b64 exec, -1""")
    a(f"""s_and_b32 s{S_T0}, s2, 7
    s_lshl_b32 s{S_T0}, s{S_T0}, 5
    s_lshr_b32 s{S_T1}, s2, 3
    s_add_u32 s{S_LIN}, s{S_T0}, s{S_T1}
    s_mov_b32 s{S_TASK}, s{S_LIN}
    s_mov_b32 s{S_FB}, 0
    s_mov_b32 s{S_TOF}, 0
    v_lshrrev_b32 v2, 6, v0
    v_and_b32 v1, 63, v0
    v_readfirstlane_b32 s{S_WAVE}, v2
    v_lshlrev_b32 v{V_L16}, 4, v1""")
    a.c("DMA source offsets: row = tid>>3, p' = tid&7 (x: p ^ (row>>1)&7 ; w: p ^ ((row&2) | (row>>3&1)<<2))")
    a(f"""v_lshrrev_b32 v3, 3, v0
    v_and_b32 v4, 7, v0
    v_bfe_u32 v5, v3, 1, 3
    v_xor_b32 v5, v5, v4
    v_lshlrev_b32 v5, 4, v5
    v_lshl_add_u32 v{GX}, v3, 10, v5
    v_and_b32 v5, 2, v3
    v_bfe_u32 v6, v3, 3, 1
    v_lshl_or_b32 v5, v6, 2, v5
    v_xor_b32 v5, v5, v4
    v_lshlrev_b32 v5, 4, v5
    v_lshl_add_u32 v{GW}, v3, 10, v5
    v_and_b32 v2, 255, v0
    v_lshlrev_b32 v2, 1, v2
    s_lshl_b32 s{S_T0}, s{S_LIN}, 9
    v_add_u32 v9, s{S_T0}, v2
    s_lshl_b32 s{S_M0}, s{S_WAVE}, 10
    s_mov_b32 s{R_WS+2}, {WS_SIZE:#x}
    s_mov_b32 s{R_WS+3}, 0x00020000
    s_mov_b32 s{R_OUT+2}, {4<<20:#x}
    s_mov_b32 s{R_OUT+3}, 0x00020000
    s_mov_b32 s{R_X+2}, {2<<20:#x}
    s_mov_b32 s{R_X+3}, 0x00020000
    s_mov_b32 s{R_WQ+2}, {512<<10:#x}
    s_mov_b32 s{R_WQ+3}, 0x00020000
    s_mov_b32 s{R_U+2}, {2<<20:#x}
    s_mov_b32 s{R_U+3}, 0x00020000
    s_mov_b32 s{R_WO+2}, {512<<10:#x}
    s_mov_b32 s{R_WO+3}, 0x00020000
    s_mov_b32 s{R_WKV+2}, 0x4000
    s_mov_b32 s{R_WKV+3}, 0x00020000
    s_lshl_b32 s{S_T0}, s{S_LIN}, 2
    s_waitcnt lgkmcnt(0)
    s_load_dword s{S_DT}, {sr(S_LDT,2)}, s{S_T0}
    s_load_dword s{S_DS}, {sr(S_DSK,2)}, s{S_T0}
    s_mov_b64 {sr(R_U,2)}, {sr(S_U,2)}
    s_mov_b64 {sr(R_X,2)}, {sr(S_X,2)}
    s_mov_b64 {sr(R_WQ,2)}, {sr(S_WQ,2)}
    s_mov_b64 {sr(R_WS,2)}, {sr(S_WS,2)}
    s_mov_b64 {sr(R_OUT,2)}, {sr(S_OUT,2)}
    s_mov_b64 {sr(R_WO,2)}, {sr(S_WO,2)}""")


def dma_x(a, pos):
    a(f"""s_add_u32 s{S_T0}, s{S_C0}, {pos}
    s_and_b32 s{S_T0}, s{S_T0}, 7
    s_lshl_b32 s{S_T0}, s{S_T0}, 7
    s_add_u32 m0, s{S_M0}, {L_G + (pos & 3)*16384}
    s_add_u32 s{S_T0}, s{S_T0}, s{S_XO}
    buffer_load_dwordx4 v{GX}, {sr(R_X,4)}, s{S_T0} offen lds""")

def dma_w(a, pos):
    a(f"""s_add_u32 s{S_T0}, s{S_C0}, {pos}
    s_and_b32 s{S_T0}, s{S_T0}, 7
    s_lshl_b32 s{S_T0}, s{S_T0}, 16
    s_add_u32 m0, s{S_M0}, {L_G + (pos & 3)*16384 + 8192}
    s_add_u32 s{S_T0}, s{S_T0}, s{S_WO_}
    buffer_load_dwordx4 v{GW}, {sr(R_WQ,4)}, s{S_T0} offen lds""")

def dma_pair(a, p):
    dma_x(a, 2*p); dma_w(a, 2*p); dma_x(a, 2*p+1); dma_w(a, 2*p+1)

def dma_wkv(a):
    a(f"""s_add_u32 s{S_T0}, s{S_C0}, s{S_WAVE}
    s_and_b32 s{S_T0}, s{S_T0}, 7
    s_lshl_b32 s{S_T1}, s{S_M0}, 1
    s_add_u32 m0, s{S_T1}, {L_WKV}
    s_lshl_b32 s{S_T0}, s{S_T0}, 11
    buffer_load_dwordx4 v{V_L16}, {sr(R_WKV,4)}, s{S_T0} offen lds
    buffer_load_dwordx4 v{V_L16}, {sr(R_WKV,4)}, s{S_T0} offen offset:1024 lds""")


def round1(a):
    a(f"""global_load_ushort v{KGP}, v9, {sr(S_ARE,2)}
    global_load_ushort v{KGP+1}, v9, {sr(S_AIM,2)}
    s_lshr_b32 s{S_RB}, s{S_TASK}, 3
    s_and_b32 s{S_CB}, s{S_TASK}, 7
    s_and_b32 s{S_T0}, s{S_TASK}, 31
    s_lshl_b32 s{S_T0}, s{S_T0}, 16
    s_lshr_b32 s{S_T1}, s{S_TASK}, 5
    s_lshl_b32 s{S_T1}, s{S_T1}, 7
    s_add_u32 m0, s{S_M0}, {L_UTILE}
    s_add_u32 s{S_T0}, s{S_T0}, s{S_T1}
    buffer_load_dwordx4 v{GW}, {sr(R_U,4)}, s{S_T0} offen lds
    s_lshl_b32 s{S_T0}, s{S_RB}, 1
    s_add_u32 s{S_C0}, s{S_T0}, s{S_CB}
    s_and_b32 s{S_C0}, s{S_C0}, 7
    s_lshl_b32 s{S_XO}, s{S_RB}, 16
    s_lshl_b32 s{S_WO_}, s{S_CB}, 7
    s_bitcmp1_b32 s{S_CB}, 0
    s_cselect_b32 s{R_WKV}, s{S_WV}, s{S_WK}
    s_cselect_b32 s{R_WKV+1}, s{S_WV+1}, s{S_WK+1}""")
    dma_x(a, 0); dma_w(a, 0); dma_w(a, 1)
    sk = a.label("r1y")
    a(f"""s_cmp_ge_u32 s{S_WAVE}, 4
    s_cbranch_scc1 {sk}
    global_load_ushort v{KGP+2}, v9, {sr(S_BRE,2)}
    global_load_ushort v{KGP+3}, v9, {sr(S_BIM,2)}
    global_load_ushort v{KGP+4}, v9, {sr(S_CRE,2)}
    global_load_ushort v{KGP+5}, v9, {sr(S_CIM,2)}
    s_cmp_ge_u32 s{S_WAVE}, 2
    s_cbranch_scc1 {sk}""")
    dma_wkv(a)
    a(f"{sk}:")
    dma_x(a, 1)


def round2(a):
    dma_pair(a, 1)
    sk = a.label("r2a"); sk2 = a.label("r2b")
    a(f"""v_mov_b32 v2, {WS_EP}
    buffer_load_dword v{V_EP}, v2, {sr(R_WS,4)}, 0 offen {SC}
    s_cmp_lt_u32 s{S_WAVE}, 2
    s_cbranch_scc1 {sk}""")
    dma_wkv(a)
    a(f"""s_branch {sk2}
    {sk}:
    s_lshl_b32 s{S_T0}, s{S_RB}, 14
    s_add_u32 m0, s{S_M0}, {L_WOT}
    s_add_u32 s{S_T0}, s{S_T0}, s{S_WO_}
    buffer_load_dwordx4 v{GW}, {sr(R_WO,4)}, s{S_T0} offen lds
    {sk2}:""")


def precompute(a):
    a.c("---- G fragment addresses ----")
    a(f"""v_lshrrev_b32 v2, 4, v1
    v_bfe_u32 v3, v1, 2, 2
    v_and_b32 v4, 3, v1
    v_lshl_add_u32 v5, v2, 3, v3
    v_lshrrev_b32 v6, 1, v3
    v_and_b32 v7, 1, v2
    v_lshl_or_b32 v6, v7, 1, v6
    s_and_b32 s{S_T0}, s{S_WAVE}, 3
    v_xor_b32 v6, s{S_T0}, v6
    v_lshlrev_b32 v6, 5, v6
    v_lshl_add_u32 v6, v4, 3, v6
    v_lshl_add_u32 v{GA}, v5, 7, v6
    v_add_u32 v{GA}, 8192, v{GA}
    v_lshlrev_b32 v6, 3, v4
    v_lshl_add_u32 v{GKW}, v5, 5, v6
    v_add_u32 v{GKW}, {L_WKV}, v{GKW}
    v_and_b32 v8, 15, v1
    v_lshrrev_b32 v5, 1, v8
    v_xor_b32 v5, v5, v2
    v_lshlrev_b32 v5, 4, v5
    v_lshl_add_u32 v5, v8, 7, v5
    s_lshr_b32 s{S_KAP}, s{S_WAVE}, 2
    s_lshl_b32 s{S_T0}, s{S_KAP}, 12
    v_add_u32 v{GB0}, s{S_T0}, v5
    v_xor_b32 v{GB1}, 64, v{GB0}
    s_lshr_b32 s{S_T0}, s{S_CB}, 1
    s_lshl_b32 s{S_T0}, s{S_T0}, 11
    v_add_u32 v{GKX0}, s{S_T0}, v5
    v_xor_b32 v{GKX1}, 64, v{GKX0}""")
    for i in range(0, 16, 2):
        a(f"v_mov_b64 {vr(G_ACC+i,2)}, 0")
    a.c("---- u transpose: wave (j = w>>1: rows 16j.., qh = w&1: quads 8qh..); lane (G, r, c=(quad lsb, octet)) ----")
    a(f"""v_and_b32 v6, 1, v1
    v_lshrrev_b32 v5, 1, v3
    v_lshl_or_b32 v5, v6, 1, v5
    v_lshrrev_b32 v7, 5, v1
    v_xor_b32 v5, v5, v7
    v_lshlrev_b32 v5, 5, v5
    v_lshl_add_u32 v5, v3, 7, v5
    v_lshl_add_u32 v5, v6, 10, v5
    v_bfe_u32 v6, v1, 1, 1
    v_lshl_add_u32 v5, v6, 3, v5
    v_and_b32 v6, 16, v1
    v_add_u32 v5, v5, v6
    s_and_b32 s{S_T0}, s{S_WAVE}, 1
    s_lshl_b32 s{S_T0}, s{S_T0}, 6
    v_xor_b32 v5, s{S_T0}, v5
    s_lshr_b32 s{S_T0}, s{S_WAVE}, 1
    s_lshl_b32 s{S_T0}, s{S_T0}, 11
    s_add_u32 s{S_T0}, s{S_T0}, {L_UTILE}
    v_add_u32 v{UA}, s{S_T0}, v5
    v_lshrrev_b32 v5, 3, v1
    v_lshlrev_b32 v5, 14, v5
    v_and_b32 v6, 7, v1
    v_lshl_add_u32 v{US}, v6, 4, v5""")
    a.c("---- Q / KV store offsets ----")
    a(f"""v_bfe_u32 v5, v1, 3, 2
    v_lshlrev_b32 v5, 13, v5
    v_lshl_add_u32 v5, v7, 9, v5
    v_lshl_add_u32 v{QS}, v6, 4, v5
    v_lshlrev_b32 v5, 9, v7
    v_lshl_add_u32 v{KVS}, v8, 4, v5""")
    a.c("---- K-gen addresses ----")
    a(f"""v_and_b32 v5, 127, v0
    v_lshlrev_b32 v5, 2, v5
    s_lshr_b32 s{S_T0}, s{S_WAVE}, 1
    s_mul_i32 s{S_T1}, s{S_T0}, {XY_CH}
    s_add_u32 s{S_T1}, s{S_T1}, {L_XY}
    v_add_u32 v{XYW}, s{S_T1}, v5
    v_mul_u32_u24 v5, {XY_ROW}, v8
    v_lshl_add_u32 v5, v2, 4, v5
    s_mul_i32 s{S_T1}, s{S_T0}, {16*XY_ROW}
    s_add_u32 s{S_T1}, s{S_T1}, {L_X}
    v_add_u32 v{KGX}, s{S_T1}, v5
    s_lshl_b32 s{S_T1}, s{S_KAP}, 1
    s_and_b32 s{S_T2}, s{S_WAVE}, 1
    s_add_u32 s{S_T1}, s{S_T1}, s{S_T2}
    s_mul_i32 s{S_T1}, s{S_T1}, {16*XY_ROW}
    s_add_u32 s{S_T1}, s{S_T1}, {L_Y}
    v_add_u32 v{KGY}, s{S_T1}, v5""")
    a.c("---- copy0: wave (ch = w>>2, rt = (w>>1)&1, ct = w&1) ----")
    l1 = a.label("rt1"); le = a.label("c0e")
    a(f"""v_lshlrev_b32 v5, 4, v8
    s_mul_i32 s{S_T0}, s{S_KAP}, {KC_CH}
    s_lshl_b32 s{S_T2}, s{S_T2}, 8
    s_sub_u32 s{S_T1}, s{S_T0}, s{S_T2}
    s_add_u32 s{S_T1}, s{S_T1}, {L_KC}
    v_sub_u32 v{C0A}, s{S_T1}, v5
    v_and_b32 v5, 255, v0
    v_lshlrev_b32 v5, 4, v5
    s_add_u32 s{S_T0}, s{S_T0}, {L_KC}
    v_add_u32 v{EXA}, s{S_T0}, v5
    v_cmp_le_u32 vcc, 32, v1
    v_and_b32 v6, 1, v2
    v_mov_b32 v{SL3}, {SEL(0,0):#x}
    s_bitcmp1_b32 s{S_WAVE}, 1
    s_cbranch_scc1 {l1}
    v_lshlrev_b32 v5, 9, v7
    v_lshl_add_u32 v5, v6, 3, v5
    v_sub_u32 v{C0A}, v{C0A}, v5
    v_mov_b32 v5, {SEL(3,2):#x}
    v_mov_b32 v6, {SEL(2,1):#x}
    v_cndmask_b32 v{SL0}, v5, v6, vcc
    v_mov_b32 v5, {SEL(1,0):#x}
    v_cndmask_b32 v{SL1}, v5, v{SL3}, vcc
    s_branch {le}
    {l1}:
    v_lshlrev_b32 v6, 9, v6
    v_add_u32 v6, 1024, v6
    v_lshlrev_b32 v6, v7, v6
    v_sub_u32 v{C0A}, v{C0A}, v6
    v_mov_b32 v5, {SEL(2,2):#x}
    v_mov_b32 v6, {SEL(1,1):#x}
    v_cndmask_b32 v{SL0}, v5, v6, vcc
    v_and_b32 v5, 1, v1
    v_mul_u32_u24 v5, 0x202, v5
    v_lshlrev_b32 v5, 16, v5
    v_add_u32 v5, {SEL(1,0):#x}, v5
    v_cndmask_b32 v{SL1}, v6, v5, vcc
    v_mov_b32 v5, {SEL(1,0):#x}
    v_cndmask_b32 v{SL2}, v5, v{SL3}, vcc
    {le}:""")
    a.c("---- zero fill address: u pad rows (threads < 320), K tails (320..351), words at L_TO (rest) ----")
    a(f"""v_lshlrev_b32 v{PBR}, 4, v0
    v_cmp_le_u32 vcc, 160, v0
    v_mov_b32 v5, {96*80 - 2560}
    v_add_u32 v{ZA}, {L_UR}, v{PBR}
    v_cndmask_b32 v5, 0, v5, vcc
    v_add_u32 v{ZA}, v{ZA}, v5
    v_subrev_u32 v5, 320, v0
    v_lshrrev_b32 v6, 2, v5
    v_mul_u32_u24 v6, {KC_COPY}, v6
    v_cmp_le_u32 vcc, 320, v0
    v_lshl_add_u32 v6, v4, 4, v6
    v_add_u32 v6, {L_KC + 4096}, v6
    v_cndmask_b32 v{ZA}, v{ZA}, v6, vcc
    v_cmp_le_u32 vcc, 352, v0
    v_mov_b32 v5, {L_TO}
    v_add_u32 v{PBR}, {L_PB}, v{PBR}
    v_cndmask_b32 v{ZA}, v{ZA}, v5, vcc""")
    a.c("---- u rows: thread t: octet = t>>1, ch = t&1 ----")
    a(f"""v_lshrrev_b32 v5, 1, v0
    v_lshlrev_b32 v5, 6, v5
    v_and_b32 v6, 1, v0
    v_lshl_add_u32 v{URL}, v6, 4, v5
    v_lshrrev_b32 v5, 3, v0
    v_mul_u32_u24 v5, 80, v5
    v_mul_u32_u24 v6, {96*80}, v6
    v_add_u32 v5, v5, v6
    v_bfe_u32 v6, v0, 1, 2
    v_lshl_add_u32 v5, v6, 4, v5
    v_add_u32 v{URW}, {L_UR + 32*80}, v5
    v_and_b32 v8, 31, v1
    v_lshlrev_b32 v{FAO}, 2, v8""")
    a.c("---- conv (waves 0..3: ch = w>>1, kk = w&1) and its epilogue (wave: I = w>>2, q = w&3) ----")
    a(f"""v_mul_u32_u24 v6, 80, v8
    v_lshl_add_u32 v5, v7, 4, v6
    s_lshr_b32 s{S_T0}, s{S_WAVE}, 1
    s_and_b32 s{S_T1}, s{S_WAVE}, 1
    s_lshl_b32 s{S_T1}, s{S_T1}, 5
    s_mul_i32 s{S_T2}, s{S_T0}, {96*80}
    s_add_u32 s{S_T2}, s{S_T2}, s{S_T1}
    s_add_u32 s{S_T2}, s{S_T2}, {L_UR + 80}
    v_add_u32 v{CVB}, s{S_T2}, v5
    v_xor_b32 v5, 3, v4
    v_mul_u32_u24 v5, {KC_COPY}, v5
    v_lshl_add_u32 v5, v7, 4, v5
    v_lshrrev_b32 v3, 2, v8
    v_lshlrev_b32 v3, 3, v3
    v_sub_u32 v5, v5, v3
    s_mul_i32 s{S_T2}, s{S_T0}, {KC_CH}
    s_add_u32 s{S_T2}, s{S_T2}, s{S_T1}
    s_add_u32 s{S_T2}, s{S_T2}, {L_KC + 2*2044 - 64*31 - 2048}
    v_add_u32 v{CVA}, s{S_T2}, v5
    s_lshl_b32 s{S_T0}, s{S_WAVE}, 13
    s_add_u32 s{S_T0}, s{S_T0}, {L_PB}
    v_add_u32 v{PBW}, s{S_T0}, v{V_L16}
    v_lshl_add_u32 v5, v7, 3, v6
    s_and_b32 s{S_T1}, s{S_WAVE}, 3
    s_mul_i32 s{S_T2}, s{S_KAP}, {32*80}
    s_lshl_b32 s{S_T3}, s{S_T1}, 4
    s_add_u32 s{S_T2}, s{S_T2}, s{S_T3}
    s_add_u32 s{S_T2}, s{S_T2}, {L_UR + 32*80}
    v_add_u32 v{EPU}, s{S_T2}, v5
    s_lshl_b32 s{S_T2}, s{S_T1}, 10
    s_add_u32 s{S_T2}, s{S_T2}, {L_QS}
    v_add_u32 v{QRD}, s{S_T2}, v{V_L16}
    v_lshlrev_b32 v5, 3, v1
    v_add_u32 v{KNR}, {L_KNS}, v5
    v_lshlrev_b32 v5, 16, v8
    v_lshl_add_u32 v{A_YA}, v7, 13, v5
    s_lshl_b32 s{S_T0}, s{S_KAP}, 21
    s_lshl_b32 s{S_T1}, s{S_T1}, 14
    s_add_u32 s{S_T0}, s{S_T0}, s{S_T1}
    s_lshl_b32 s{S_T1}, s{S_LIN}, 2
    s_add_u32 s{S_Y0}, s{S_T0}, s{S_T1}""")
    a.c("---- attention constants ----")
    a(f"""v_mov_b32 v{A_IDX}, 0xdddddddd
    v_and_b32 v2, 1, v1
    v_mul_u32_u24 v2, 0xaaaa, v2
    v_add_u32 v{A_IDX2}, 0x4444, v2
    s_mov_b32 s{S_VMASK}, 0xffff
    s_mov_b32 s{S_VMASK+1}, 0xffff
    v_and_b32 v2, 27, v1
    v_cmp_eq_u32 vcc, 16, v2
    v_mov_b32 v3, 0x3f803f80
    s_lshl_b32 s{S_T0}, s{S_KAP}, 11
    v_cndmask_b32 v2, 0, v3, vcc
    v_add_u32 v{A_ADDR}, s{S_T0}, v{V_L16}
    v_mov_b32 v3, v2""")
    for i in range(0, 16, 2):
        a(f"v_mov_b64 {vr(A_V0+i,2)}, v[2:3]")
    for i in range(0, 16, 2):
        a(f"v_mov_b64 {vr(A_ACC+i,2)}, 0")
    for i in range(0, 10, 2):
        a(f"v_mov_b64 {vr(A_O+i,2)}, 0")
    a.c("---- dt = bf16(exp(log_dt)) of this wave's channel ----")
    LOG2E = math.log2(math.e)
    L_hi = struct.unpack("<f", struct.pack("<f", LOG2E))[0]
    L_lo = LOG2E - L_hi
    a(f"""s_waitcnt lgkmcnt(0)
    s_bitcmp1_b32 s{S_WAVE}, 1
    s_cselect_b32 s{S_T0}, 0, 16
    s_lshl_b32 s{S_T0}, s{S_DT}, s{S_T0}
    s_and_b32 s{S_T0}, s{S_T0}, 0xffff0000
    s_mov_b32 s{S_K0}, {f2u(L_hi):#x}
    v_mov_b32 v2, s{S_T0}
    v_mul_f32 v3, s{S_K0}, v2
    v_fma_f32 v4, v2, s{S_K0}, -v3
    v_fmac_f32 v4, {f2u(L_lo):#x}, v2
    v_exp_f32 v3, v3
    v_mul_f32 v4, {f2u(math.log(2.0)):#x}, v4
    v_fma_f32 v3, v3, v4, v3
    v_cvt_pk_bf16_f32 v3, v3, v3
    v_lshlrev_b32 v{KG+2}, 16, v3""")


def g_steps(a, poss, kv):
    steps = [(s, ks) for s in poss for ks in range(2)]
    nrd = 4 + (3 if kv else 0)
    FS = 20
    def reads(i):
        s, ks = steps[i]
        F = G_FR + (i & 1) * FS
        so = (s & 3) * 16384
        a(f"""ds_read_b64_tr_b16 {vr(F,2)}, v{GA} offset:{so + ks*4096}
        ds_read_b64_tr_b16 {vr(F+2,2)}, v{GA} offset:{so + ks*4096 + 512}
        ds_read_b128 {vr(F+4,4)}, v{GB0+ks} offset:{so}
        ds_read_b128 {vr(F+8,4)}, v{GB0+ks} offset:{so + 2048}""")
        if kv:
            a(f"""ds_read_b64_tr_b16 {vr(F+12,2)}, v{GKW} offset:{s*2048 + ks*1024}
            ds_read_b64_tr_b16 {vr(F+14,2)}, v{GKW} offset:{s*2048 + ks*1024 + 128}
            ds_read_b128 {vr(F+16,4)}, v{GKX0+ks} offset:{so}""")
    reads(0)
    for i in range(len(steps)):
        F = G_FR + (i & 1) * FS
        if i + 1 < len(steps):
            reads(i + 1)
            a(f"s_waitcnt lgkmcnt({nrd})")
        else:
            a("s_waitcnt lgkmcnt(0)")
        a(f"""v_mfma_f32_16x16x32_bf16 {vr(G_ACC,4)}, {vr(F,4)}, {vr(F+4,4)}, {vr(G_ACC,4)}
        v_mfma_f32_16x16x32_bf16 {vr(G_ACC+4,4)}, {vr(F,4)}, {vr(F+8,4)}, {vr(G_ACC+4,4)}""")
        if kv:
            a(f"""v_mfma_f32_16x16x32_bf16 {vr(G_ACCK,4)}, {vr(F+12,4)}, {vr(F+16,4)}, {vr(G_ACCK,4)}
            v_mfma_f32_16x16x32_bf16 {vr(G_ACCV,4)}, {vr(F+16,4)}, {vr(F+12,4)}, {vr(G_ACCV,4)}""")


def g_pair(a, p):
    lk = a.label("gkv"); le = a.label("gend")
    a.c(f"---- projection MFMAs, chunk pair {p} ----")
    a(f"""s_cmp_eq_u32 s{S_WAVE}, {KV_WAVE}
    s_cbranch_scc1 {lk}""")
    g_steps(a, [2*p, 2*p+1], False)
    a(f"s_branch {le}\n{lk}:")
    g_steps(a, [2*p, 2*p+1], True)
    a(f"{le}:")


def phase_u(a):
    a.c("---- u transpose ----")
    a(f"""ds_read_b64_tr_b16 v[2:3], v{UA}
    ds_read_b64_tr_b16 v[4:5], v{UA} offset:512
    s_lshr_b32 s{S_T0}, s{S_TASK}, 5
    s_lshl_b32 s{S_T0}, s{S_T0}, 18
    s_and_b32 s{S_T1}, s{S_TASK}, 31
    s_lshl_b32 s{S_T1}, s{S_T1}, 9
    s_add_u32 s{S_T0}, s{S_T0}, s{S_T1}
    s_lshr_b32 s{S_T1}, s{S_WAVE}, 1
    s_lshl_b32 s{S_T1}, s{S_T1}, 7
    s_add_u32 s{S_T0}, s{S_T0}, s{S_T1}
    s_and_b32 s{S_T1}, s{S_WAVE}, 1
    s_lshl_b32 s{S_T1}, s{S_T1}, 17
    s_add_u32 s{S_T0}, s{S_T0}, s{S_T1}
    s_add_u32 s{S_T0}, s{S_T0}, {WS_UT}
    s_waitcnt lgkmcnt(0)
    buffer_store_dwordx4 v[2:5], v{US}, {sr(R_WS,4)}, s{S_T0} offen {SC}""")


def phase_wt(a):
    a.c("---- wo fragments (waves 0,1) ----")
    sk = a.label("nowt")
    a(f"""s_cmp_ge_u32 s{S_WAVE}, 2
    s_cbranch_scc1 {sk}
    v_lshrrev_b32 v2, 4, v1
    v_and_b32 v5, 3, v1
    v_bfe_u32 v3, v1, 2, 1
    v_bfe_u32 v4, v1, 3, 1
    v_lshl_add_u32 v3, v4, 2, v3
    v_lshlrev_b32 v3, 7, v3
    v_lshl_add_u32 v3, v5, 3, v3
    v_lshl_add_u32 v3, v2, 5, v3
    s_lshl_b32 s{S_T0}, s{S_WAVE}, 6
    v_xor_b32 v3, s{S_T0}, v3
    s_add_u32 s{S_T0}, s{S_M0}, {L_WOT}
    v_add_u32 v3, s{S_T0}, v3
    v_xor_b32 v4, 32, v3
    ds_read_b64_tr_b16 v[6:7], v3
    ds_read_b64_tr_b16 v[8:9], v4 offset:256
    v_lshrrev_b32 v3, 2, v1
    v_lshlrev_b32 v3, 4, v3
    v_lshl_add_u32 v3, v5, 8, v3
    v_add_u32 v3, s{S_T0}, v3
    v_add_u32 v4, s{S_T0}, v{V_L16}
    v_and_b32 v5, 15, v1
    v_lshlrev_b32 v5, 4, v5
    v_lshl_add_u32 v2, v2, 11, v5
    s_waitcnt lgkmcnt(0)
    ds_write_b128 v3, v[6:9]
    ds_read_b128 v[6:9], v4
    s_lshr_b32 s{S_T0}, s{S_RB}, 2
    s_lshl_b32 s{S_T0}, s{S_T0}, 16
    s_lshl_b32 s{S_T1}, s{S_CB}, 13
    s_add_u32 s{S_T0}, s{S_T0}, s{S_T1}
    s_and_b32 s{S_T1}, s{S_RB}, 3
    s_lshl_b32 s{S_T1}, s{S_T1}, 9
    s_add_u32 s{S_T0}, s{S_T0}, s{S_T1}
    s_lshl_b32 s{S_T1}, s{S_WAVE}, 8
    s_add_u32 s{S_T0}, s{S_T0}, s{S_T1}
    s_add_u32 s{S_T0}, s{S_T0}, {WS_WT}
    s_waitcnt lgkmcnt(0)
    buffer_store_dwordx4 v[6:9], v2, {sr(R_WS,4)}, s{S_T0} offen {SC}
    {sk}:""")


def kg_valu(a):
    AL, BE, DT = KG, KG + 1, KG + 2
    T = KG + 4
    Z, W = KG + 8, KG + 10
    P = KG + 12
    Z2 = KG + 30
    TT = KG + 32
    O = KG + 42
    R = XY_ROW
    a.c("---- K-gen VALU ----")
    a(f"""v_lshlrev_b32 v{KGP}, 16, v{KGP}
    v_lshlrev_b32 v{KGP+1}, 16, v{KGP+1}
    s_cmp_ge_u32 s{S_WAVE}, 4
    s_cselect_b32 s{S_T0}, {f2u(8.0):#x}, {f2u(1.0):#x}
    s_mov_b32 s{S_T1}, {f2u(256.0):#x}
    s_cselect_b32 s{S_T1}, {f2u(32.0):#x}, s{S_T1}
    s_cselect_b32 s{S_T2}, {f2u(-1/(2*math.pi)):#x}, {f2u(1/(2*math.pi)):#x}
    v_mul_f32 v{AL}, v{DT}, v{KGP}
    v_mul_f32 v{BE}, v{DT}, v{KGP+1}
    v_mul_f32 v{AL}, s{S_K0}, v{AL}
    v_mul_f32 v{BE}, s{S_T2}, v{BE}
    v_mul_f32 v{T}, s{S_T0}, v{AL}
    v_mul_f32 v{T+1}, s{S_T0}, v{BE}
    v_mul_f32 v{T+2}, s{S_T1}, v{AL}
    v_mul_f32 v{T+3}, s{S_T1}, v{BE}
    v_exp_f32 v{T}, v{T}
    v_fract_f32 v{T+1}, v{T+1}
    v_exp_f32 v{T+2}, v{T+2}
    v_fract_f32 v{T+3}, v{T+3}
    v_cos_f32 v{Z}, v{T+1}
    v_sin_f32 v{Z+1}, v{T+1}
    v_cos_f32 v{W}, v{T+3}
    v_sin_f32 v{W+1}, v{T+3}
    v_pk_mul_f32 {vr(Z,2)}, {vr(Z,2)}, {vr(T,2)} op_sel:[0,0] op_sel_hi:[1,0]
    v_pk_mul_f32 {vr(W,2)}, {vr(W,2)}, {vr(T+2,2)} op_sel:[0,0] op_sel_hi:[1,0]""")
    st = dict(o=0)
    def muls(lst, puts=()):
        puts = list(puts)
        def fill():
            if puts:
                src, offs = puts.pop(0)
                o = O + (st["o"] & 7); st["o"] += 1
                a(f"v_cvt_pk_bf16_f32 v{o}, v{src}, v{src+1}")
                for x in offs: a(f"ds_write_b32 v{XYW}, v{o} offset:{x}")
        while puts and any(d == s for d, _, _ in lst for s, _ in puts):
            fill()
        for k, (D, Pp, Ww) in enumerate(lst):
            a(f"v_pk_mul_f32 {vr(TT+2*k,2)}, {vr(Pp,2)}, {vr(Ww,2)} op_sel:[0,0] op_sel_hi:[0,1]")
        fill()
        for k, (D, Pp, Ww) in enumerate(lst):
            a(f"v_pk_fma_f32 {vr(D,2)}, {vr(Pp,2)}, {vr(Ww,2)}, {vr(TT+2*k,2)} op_sel:[1,1,0] op_sel_hi:[1,0,1] neg_lo:[1,0,0]")
        while puts: fill()
    ly = a.label("kgy"); le = a.label("kge")
    a(f"s_cbranch_scc1 {ly}")
    for i in range(2, 6):
        a(f"v_lshlrev_b32 v{KGP+i}, 16, v{KGP+i}")
    a(f"v_pk_mul_f32 {vr(KGP+2,2)}, {vr(KGP+2,2)}, {vr(DT,2)} op_sel:[0,0] op_sel_hi:[1,0]")
    p = lambda e: P + 2*e
    muls([(p(0), KGP+4, KGP+2), (Z2, Z, Z)])
    muls([(p(1), p(0), Z), (p(2), p(0), Z2), (T, Z2, Z2)], [(p(0), [0])])
    muls([(p(3), p(1), Z2), (p(4), p(0), T), (p(5), p(1), T), (p(6), p(2), T)], [(p(1), [R]), (p(2), [2*R])])
    muls([(p(7), p(3), T), (p(8), p(4), T), (p(0), p(0), W), (p(2), p(2), W)], [(p(3), [3*R]), (p(4), [4*R]), (p(5), [5*R]), (p(6), [6*R])])
    muls([(p(4), p(4), W), (p(6), p(6), W), (p(8), p(8), W), (p(1), p(0), W)], [(p(7), [7*R]), (p(0), [8*R]), (p(2), [9*R])])
    muls([(p(3), p(4), W), (p(5), p(8), W), (p(0), p(1), W)], [(p(4), [10*R, 12*R]), (p(6), [13*R]), (p(8), [14*R]), (p(1), [16*R])])
    muls([(p(4), p(3), W), (p(8), p(5), W), (p(1), p(0), W)], [(p(3), [17*R]), (p(5), [18*R]), (p(0), [20*R])])
    muls([(p(5), p(8), W), (p(0), p(1), W)], [(p(4), [21*R]), (p(8), [22*R]), (p(1), [24*R])])
    muls([(p(8), p(5), W), (p(1), p(0), W)], [(p(5), [25*R]), (p(0), [26*R])])
    muls([(p(5), p(8), W), (p(0), p(1), W)], [(p(8), [27*R]), (p(1), [28*R])])
    muls([(p(8), p(5), W)], [(p(5), [29*R]), (p(0), [30*R])])
    muls([], [(p(8), [31*R])])
    a(f"s_branch {le}\n{ly}:")
    a(f"""v_mov_b32 v{O}, 0x3f80
    ds_write_b32 v{XYW}, v{O}""")
    st["o"] = 1
    muls([(p(2), Z, Z), (p(5), Z, W), (p(0), W, W)], [(Z, [R]), (W, [4*R])])
    muls([(p(3), p(2), Z), (p(6), p(2), W), (p(1), p(5), W), (p(4), p(0), W)], [(p(2), [2*R]), (p(5), [5*R]), (p(0), [8*R])])
    muls([(p(7), p(3), W), (p(2), p(6), W), (p(5), p(1), W), (p(0), p(4), W)], [(p(3), [3*R]), (p(6), [6*R]), (p(1), [9*R]), (p(4), [12*R])])
    cur = [(p(7), 7), (p(2), 10), (p(5), 13), (p(0), 16)]
    alt = {p(7): p(3), p(3): p(7), p(2): p(6), p(6): p(2), p(5): p(1), p(1): p(5), p(0): p(4), p(4): p(0)}
    while cur:
        nxt = [(alt[r], lo + 4) for r, lo in cur if lo + 4 < 32]
        muls([(alt[r], r, W) for r, lo in cur if lo + 4 < 32], [(r, [lo*R]) for r, lo in cur])
        cur = nxt
    a(f"{le}:")


def kg_mfma(a):
    F = 192
    a.c("---- K-gen MFMA ----")
    for ks in range(7):
        a(f"""ds_read_b128 {vr(F+8*ks,4)}, v{KGX} offset:{64*ks}
        ds_read_b128 {vr(F+8*ks+4,4)}, v{KGY} offset:{64*ks}""")
    for ks in range(8):
        if ks == 0:
            a("s_waitcnt lgkmcnt(12)")
            a(f"v_mfma_f32_16x16x32_bf16 {vr(KG_D,4)}, {vr(F,4)}, {vr(F+4,4)}, 0")
            a(f"""ds_read_b128 {vr(F,4)}, v{KGX} offset:{64*7}
            ds_read_b128 {vr(F+4,4)}, v{KGY} offset:{64*7}""")
        else:
            FF = F + 8*(ks % 7)
            a(f"s_waitcnt lgkmcnt({14 - 2*ks})")
            a(f"v_mfma_f32_16x16x32_bf16 {vr(KG_D,4)}, {vr(FF,4)}, {vr(FF+4,4)}, {vr(KG_D,4)}")


def kg_copy0(a):
    a.c("---- K copy0 + zero fill ----")
    B = KG
    l1 = a.label("rt1"); le = a.label("c0e")
    a(f"""v_cvt_pk_bf16_f32 v2, v{KG_D}, v{KG_D+1}
    v_cvt_pk_bf16_f32 v3, v{KG_D+2}, v{KG_D+3}
    v_mov_b64 v[4:5], 0
    v_mov_b64 v[6:7], 0
    ds_write_b128 v{ZA}, v[4:7]
    v_perm_b32 v{B}, v3, v2, v{SL0}
    v_perm_b32 v{B+1}, v3, v2, v{SL1}
    s_bitcmp1_b32 s{S_WAVE}, 1
    s_cbranch_scc1 {l1}
    ds_write_b64 v{C0A}, {vr(B,2)} offset:{2*2044}
    s_branch {le}
    {l1}:
    v_perm_b32 v{B+2}, v3, v2, v{SL2}
    v_perm_b32 v{B+3}, v3, v2, v{SL3}
    ds_write_b128 v{C0A}, {vr(B,4)} offset:{2*2040}
    v_perm_b32 v{B+4}, v2, v3, v{SL0}
    v_perm_b32 v{B+5}, v2, v3, v{SL1}
    v_perm_b32 v{B+6}, v2, v3, v{SL2}
    v_perm_b32 v{B+7}, v2, v3, v{SL3}
    s_mov_b32 exec_lo, 0
    ds_write_b128 v{C0A}, {vr(B+4,4)} offset:{2*2040 - 512}
    s_mov_b32 exec_lo, -1
    {le}:""")


def kg_expand_read(a):
    B = KG
    a(f"""ds_read_b128 {vr(B,4)}, v{EXA}
    ds_read_b64 {vr(B+4,2)}, v{EXA} offset:16""")

def kg_expand(a):
    B = KG
    a.c("---- T4 expansion ----")
    for k in range(4):
        a(f"v_alignbit_b32 v{B+8+k}, v{B+1+k}, v{B+k}, 16")
    a(f"ds_write_b128 v{EXA}, {vr(B+8,4)} offset:{KC_COPY}")
    for k in range(4):
        a(f"v_mov_b32 v{B+12+k}, v{B+1+k}")
    a(f"ds_write_b128 v{EXA}, {vr(B+12,4)} offset:{2*KC_COPY}")
    for k in range(4):
        a(f"v_alignbit_b32 v{B+16+k}, v{B+2+k}, v{B+1+k}, 16")
    a(f"ds_write_b128 v{EXA}, {vr(B+16,4)} offset:{3*KC_COPY}")


def g_epilogue(a):
    a.c("---- Q store ----")
    E = G_FR
    a(f"""s_lshl_b32 s{S_T1}, s{S_KAP}, 15
    s_add_u32 s{S_T0}, s{S_XO}, s{S_T1}
    s_lshl_b32 s{S_T1}, s{S_CB}, 10
    s_add_u32 s{S_T0}, s{S_T0}, s{S_T1}
    s_and_b32 s{S_T1}, s{S_WAVE}, 3
    s_lshl_b32 s{S_T1}, s{S_T1}, 7
    s_add_u32 s{S_T0}, s{S_T0}, s{S_T1}
    s_nop 0
    v_cvt_pk_bf16_f32 v{E}, v{G_ACC}, v{G_ACC+1}
    v_cvt_pk_bf16_f32 v{E+1}, v{G_ACC+2}, v{G_ACC+3}
    v_cvt_pk_bf16_f32 v{E+2}, v{G_ACC+4}, v{G_ACC+5}
    v_cvt_pk_bf16_f32 v{E+3}, v{G_ACC+6}, v{G_ACC+7}
    s_nop 1
    v_permlane16_swap_b32 v{E}, v{E+2}
    v_permlane16_swap_b32 v{E+1}, v{E+3}
    buffer_store_dwordx4 {vr(E,4)}, v{QS}, {sr(R_WS,4)}, s{S_T0} offen {SC}""")
    le = a.label("kvend"); lv = a.label("isv"); ls = a.label("kvst")
    scale = 0.25 * math.log2(math.e)
    K = E + 4
    a(f"""s_cmp_lg_u32 s{S_WAVE}, {KV_WAVE}
    s_cbranch_scc1 {le}
    s_lshr_b32 s{S_T0}, s{S_TASK}, 2
    s_lshl_b32 s{S_T0}, s{S_T0}, 11
    s_bfe_u32 s{S_T1}, s{S_CB}, 0x10001
    s_lshl_b32 s{S_T1}, s{S_T1}, 8
    s_add_u32 s{S_T0}, s{S_T0}, s{S_T1}
    s_add_u32 s{S_T0}, s{S_T0}, {WS_KV + 1024}
    s_bitcmp1_b32 s{S_CB}, 0
    s_cbranch_scc1 {ls}
    s_sub_u32 s{S_T0}, s{S_T0}, 1024""")
    for i in range(4):
        a(f"v_mul_f32 v{G_ACCV+i}, {f2u(scale):#x}, v{G_ACCK+i}")
    a(f"""{ls}:
    v_cvt_pk_bf16_f32 v{K}, v{G_ACCV}, v{G_ACCV+1}
    v_cvt_pk_bf16_f32 v{K+1}, v{G_ACCV+2}, v{G_ACCV+3}
    v_cvt_pk_bf16_f32 v{K+2}, v{G_ACCV}, v{G_ACCV+1}
    v_cvt_pk_bf16_f32 v{K+3}, v{G_ACCV+2}, v{G_ACCV+3}
    v_mul_f32 v4, v{G_ACCV}, v{G_ACCV}
    v_fmac_f32 v4, v{G_ACCV+1}, v{G_ACCV+1}
    v_permlane16_swap_b32 v{K}, v{K+2}
    v_permlane16_swap_b32 v{K+1}, v{K+3}
    s_mov_b64 exec, {sr(S_VMASK,2)}
    buffer_store_dwordx4 {vr(K,4)}, v{KVS}, {sr(R_WS,4)}, s{S_T0} offen {SC}
    s_mov_b64 exec, -1
    s_bitcmp1_b32 s{S_CB}, 0
    s_cbranch_scc1 {le}
    v_fmac_f32 v4, v{G_ACCV+2}, v{G_ACCV+2}
    v_fmac_f32 v4, v{G_ACCV+3}, v{G_ACCV+3}
    v_mov_b32 v5, v4
    s_nop 1
    v_permlane32_swap_b32 v4, v5
    s_nop 1
    v_add_f32 v4, v4, v5
    v_mov_b32 v5, v4
    s_nop 1
    v_permlane16_swap_b32 v4, v5
    s_nop 1
    v_add_f32 v4, v4, v5
    s_nop 1
    v_max_f32_dpp v4, v4, v4 row_ror:8 row_mask:0xf bank_mask:0xf
    s_nop 1
    v_max_f32_dpp v4, v4, v4 row_ror:4 row_mask:0xf bank_mask:0xf
    s_nop 1
    v_max_f32_dpp v4, v4, v4 row_ror:2 row_mask:0xf bank_mask:0xf
    s_nop 1
    v_max_f32_dpp v4, v4, v4 row_ror:1 row_mask:0xf bank_mask:0xf
    s_lshl_b32 s{S_T0}, s{S_TASK}, 1
    s_add_u32 s{S_T0}, s{S_T0}, {WS_KN}
    v_mov_b32 v5, 0
    s_mov_b64 exec, 1
    buffer_store_dword v4, v5, {sr(R_WS,4)}, s{S_T0} offen {SC}
    s_mov_b64 exec, -1
    {le}:""")


def flag_store(a, which):
    a(f"""s_lshl_b32 s{S_T0}, {'s%d' % S_LIN if which == 'A' else 's2'}, 2
    s_add_u32 s{S_T0}, s{S_T0}, {WS_FA if which == 'A' else WS_FB}
    v_mov_b32 v2, 0
    v_mov_b32 v3, s{S_TAG}
    s_mov_b64 exec, 1
    buffer_store_dword v3, v2, {sr(R_WS,4)}, s{S_T0} offen {SC}
    s_mov_b64 exec, -1""")


def signal_a(a, wave):
    sk = a.label("nofl")
    a(f"""s_lshl_b32 s{S_T0}, s{S_FB}, 4
    s_add_u32 s{S_T0}, s{S_T0}, s{S_WAVE}
    s_cmp_lg_u32 s{S_T0}, {wave}
    s_cbranch_scc1 {sk}""")
    flag_store(a, "A")
    a(f"{sk}:")


def poll_a_issue(a):
    a(f"""s_lshr_b32 s{S_T0}, s{S_LIN}, 5
    s_lshl_b32 s{S_T0}, s{S_T0}, 7
    s_add_u32 s{S_W0}, s{S_T0}, {WS_FA}
    buffer_load_dword v{V_FA}, v{FAO}, {sr(R_WS,4)}, s{S_W0} offen {SC}""")


def poll_a_check_and_load_u(a):
    ok = a.label("aok"); lp = a.label("aspin")
    a(f"""s_mov_b32 s{S_CNT}, 0
    s_lshr_b32 s{S_T0}, s{S_LIN}, 1
    s_lshl_b32 s{S_T0}, s{S_T0}, 14
    s_and_b32 s{S_T1}, s{S_LIN}, 1
    s_lshl_b32 s{S_T1}, s{S_T1}, 5
    s_add_u32 s{S_T0}, s{S_T0}, s{S_T1}
    s_add_u32 s{S_T0}, s{S_T0}, {WS_UT}
    s_cmp_lg_u32 s{S_FB}, 0
    s_waitcnt vmcnt(0)
    s_cbranch_scc1 {ok}
    {lp}:
    v_cmp_ne_u32 vcc, s{S_TAG}, v{V_FA}
    s_cbranch_vccz {ok}
    s_sleep 8
    buffer_load_dword v{V_FA}, v{FAO}, {sr(R_WS,4)}, s{S_W0} offen {SC}
    s_add_u32 s{S_CNT}, s{S_CNT}, 1
    s_cmp_lt_u32 s{S_CNT}, {SPIN_MAX}
    s_waitcnt vmcnt(0)
    s_cbranch_scc1 {lp}
    s_mov_b32 s{S_TOF}, 1
    {ok}:
    buffer_load_dwordx4 {vr(UR_LD,4)}, v{URL}, {sr(R_WS,4)}, s{S_T0} offen {SC}""")


def to_record(a):
    sk = a.label("noto")
    a(f"""s_cmp_eq_u32 s{S_TOF}, 0
    s_cbranch_scc1 {sk}
    v_mov_b32 v2, {L_TO}
    v_mov_b32 v3, 1
    ds_write_b32 v2, v3
    {sk}:""")


def ack_add():
    return f"""s_waitcnt vmcnt(0)
    v_mov_b32 v2, {L_TO}
    v_mov_b32 v3, 1
    s_mov_b64 exec, 1
    ds_add_u32 v2, v3 offset:4
    s_mov_b64 exec, -1"""


def cv_run(a):
    def rd(st, j):
        F = CV_FR + 16*st
        return [f"ds_read_b64 {vr(F,2)}, v{CVA} offset:{64*j + 2048}",
                f"ds_read_b64 {vr(F+2,2)}, v{CVA} offset:{64*j + 2048 + 8}",
                f"ds_read_b128 {vr(F+8,4)}, v{CVB} offset:{80*j}",
                f"ds_read_b128 {vr(F+12,4)}, v{CVB} offset:{80*j + 2560}",
                f"ds_read_b64 {vr(F+4,2)}, v{CVA} offset:{64*j}",
                f"ds_read_b64 {vr(F+6,2)}, v{CVA} offset:{64*j + 8}"]
    a.c("---- conv ----")
    a.reset()
    tok = {}
    def issue(j, part):
        if j >= 32: return
        R = rd(j % 3, j)
        for x in R[2*part:2*part+2]:
            tok[(j, R.index(x))] = a.lds(x)
    for j in range(2):
        for part in range(3): issue(j, part)
    a(".p2align 3")
    for j in range(32):
        F = CV_FR + 16*(j % 3)
        c0 = "0" if j == 0 else vr(CV_ACC, 16)
        c1 = "0" if j == 0 else vr(CV_ACC+16, 16)
        a.wait_l(tok[(j, 5)])
        a(f"v_mfma_f32_32x32x16_bf16 {vr(CV_ACC,16)}, {vr(F,4)}, {vr(F+8,4)}, {c0}")
        issue(j + 2, 0)
        a(f"v_mfma_f32_32x32x16_bf16 {vr(CV_ACC+16,16)}, {vr(F,4)}, {vr(F+12,4)}, {c1}")
        issue(j + 2, 1)
        a(f"v_mfma_f32_32x32x16_bf16 {vr(CV_ACC+16,16)}, {vr(F+4,4)}, {vr(F+8,4)}, {vr(CV_ACC+16,16)}")
        issue(j + 2, 2)
        if j == 6:
            a(ack_add()); a.nl += 1
    a("s_nop 9")
    for q in range(8):
        if q == 4: a("s_nop 0")
        a(f"ds_write_b128 v{PBW}, {vr(CV_ACC+4*q,4)} offset:{1024*q}")


def loader_b(a):
    ok = a.label("bok"); lp = a.label("bspin"); la = a.label("ackl")
    EARLY = OPT["early"]
    a(f"""v_mov_b32 v4, {L_TO}
    {la}:
    ds_read_b32 v5, v4 offset:4
    s_waitcnt lgkmcnt(0)
    v_cmp_ne_u32 vcc, 8, v5
    s_cbranch_vccnz {la}
    s_mov_b32 s{S_CNT}, 0
    s_cmp_lg_u32 s{S_FB}, 0
    s_cbranch_scc1 {ok}""")
    flag_store(a, "B")
    a.stamp("sigB")
    a(f"""s_mov_b32 s{S_T0}, {WS_FB}
    s_sleep {OPT["delay"]}
    {lp}:
    buffer_load_dwordx4 v[4:7], v{V_L16}, {sr(R_WS,4)}, s{S_T0} offen {SC}
    s_add_u32 s{S_CNT}, s{S_CNT}, 1
    s_waitcnt vmcnt(0)
    v_xor_b32 v4, s{S_TAG}, v4
    v_xor_b32 v5, s{S_TAG}, v5
    v_xor_b32 v6, s{S_TAG}, v6
    v_xor_b32 v7, s{S_TAG}, v7
    v_or3_b32 v4, v4, v5, v6
    v_or_b32 v4, v4, v7
    v_cmp_ne_u32 vcc, 0, v4
    s_cbranch_vccz {ok}
    s_mov_b64 exec, vcc
    s_sleep {OPT["sleep"]}
    s_cmp_lt_u32 s{S_CNT}, {SPIN_MAX}
    s_cbranch_scc1 {lp}
    s_mov_b32 s{S_TOF}, 1
    {ok}:
    s_mov_b64 exec, -1""")
    a.stamp("flagB")
    a(f"""s_lshl_b32 s{S_T0}, s{S_LIN}, 13
    s_mov_b32 m0, {L_QS}
    s_add_u32 s{S_T1}, s{S_T0}, 4096""")
    for j in range(4):
        a(f"buffer_load_dwordx4 v{V_L16}, {sr(R_WS,4)}, s{S_T0} offen offset:{1024*j} {SC} lds")
    a(f"""s_mov_b32 m0, {L_QS + 4096}
    s_mov_b32 s{S_T0}, {WS_KN}""")
    for j in range(4):
        a(f"buffer_load_dwordx4 v{V_L16}, {sr(R_WS,4)}, s{S_T1} offen offset:{1024*j} {SC} lds")
    a(f"""s_mov_b32 m0, {L_KNS}
    s_mov_b32 s{S_T1}, {WS_KV}
    buffer_load_dwordx4 v{V_L16}, {sr(R_WS,4)}, s{S_T0} offen {SC} lds
    s_mov_b32 s{S_T2}, {WS_KV + 65536}
    s_mov_b32 s{S_T3}, {L_KV}""")
    lp2 = a.label("kvl")
    a(f"""{lp2}:
    s_mov_b32 m0, s{S_T3}
    s_add_u32 s{S_T3}, s{S_T3}, 2048
    buffer_load_dwordx4 v{V_L16}, {sr(R_WS,4)}, s{S_T1} offen {SC} lds
    buffer_load_dwordx4 v{V_L16}, {sr(R_WS,4)}, s{S_T1} offen offset:1024 {SC} lds
    s_mov_b32 m0, s{S_T3}
    s_add_u32 s{S_T3}, s{S_T3}, 2048
    buffer_load_dwordx4 v{V_L16}, {sr(R_WS,4)}, s{S_T2} offen {SC} lds
    buffer_load_dwordx4 v{V_L16}, {sr(R_WS,4)}, s{S_T2} offen offset:1024 {SC} lds
    s_add_u32 s{S_T1}, s{S_T1}, 2048
    s_add_u32 s{S_T2}, s{S_T2}, 2048
    s_waitcnt vmcnt(40)
    s_cmp_lt_u32 s{S_T3}, {L_KV + EARLY*4096}
    s_cbranch_scc1 {lp2}
    s_waitcnt vmcnt(0)""")
    to_record(a)


def cv_epilogue_and_shift(a):
    B = 128
    a.c("---- conv epilogue + softmax shift ----")
    a(f"""v_mov_b32 v6, {L_TO}
    ds_read_b32 v6, v6
    ds_read_b128 {vr(A_Q0,4)}, v{QRD}
    ds_read_b128 {vr(A_Q1,4)}, v{QRD} offset:4096
    ds_read_b64 v[8:9], v{KNR}
    ds_read_b128 {vr(B,4)}, v{PBR}
    ds_read_b128 {vr(B+4,4)}, v{PBR} offset:8192
    ds_read_b128 {vr(B+8,4)}, v{PBR} offset:16384
    ds_read_b128 {vr(B+12,4)}, v{PBR} offset:24576
    ds_read_b64 {vr(B+16,2)}, v{EPU}
    ds_read_b64 {vr(B+18,2)}, v{EPU} offset:{96*80}
    ds_read_b128 {vr(A_K,4)}, v{A_ADDR}
    s_mov_b64 exec, {sr(S_VMASK,2)}
    ds_read_b128 {vr(A_V0,4)}, v{A_ADDR} offset:1024
    ds_read_b128 {vr(A_V0+4,4)}, v{A_ADDR} offset:1280
    s_mov_b64 exec, -1
    s_lshl_b32 s{S_K0}, s{S_DS}, 16
    s_and_b32 s{S_K1}, s{S_DS}, 0xffff0000
    s_waitcnt lgkmcnt(9)
    v_readfirstlane_b32 s{S_T0}, v6
    v_max_f32 v9, v8, v9
    v_dot2_f32_bf16 v2, v{A_Q0}, v{A_Q0}, 0
    v_dot2_f32_bf16 v4, v{A_Q1}, v{A_Q1}, 0
    v_max_f32_dpp v9, v9, v9 row_ror:8 row_mask:0xf bank_mask:0xf
    v_dot2_f32_bf16 v2, v{A_Q0+1}, v{A_Q0+1}, v2
    v_dot2_f32_bf16 v4, v{A_Q1+1}, v{A_Q1+1}, v4
    s_cmp_lg_u32 s{S_T0}, 0
    s_cbranch_scc1 L_fallback
    v_max_f32_dpp v9, v9, v9 row_ror:4 row_mask:0xf bank_mask:0xf
    v_dot2_f32_bf16 v2, v{A_Q0+2}, v{A_Q0+2}, v2
    v_dot2_f32_bf16 v4, v{A_Q1+2}, v{A_Q1+2}, v4
    v_max_f32_dpp v9, v9, v9 row_ror:2 row_mask:0xf bank_mask:0xf
    v_dot2_f32_bf16 v2, v{A_Q0+3}, v{A_Q0+3}, v2
    v_dot2_f32_bf16 v4, v{A_Q1+3}, v{A_Q1+3}, v4
    v_max_f32_dpp v9, v9, v9 row_ror:1 row_mask:0xf bank_mask:0xf
    s_waitcnt lgkmcnt(3)
    s_barrier
    v_mov_b32 v8, v9
    v_mov_b32 v3, v2
    v_mov_b32 v5, v4
    v_permlane16_swap_b32 v8, v9
    v_permlane32_swap_b32 v2, v3
    v_permlane32_swap_b32 v4, v5
    v_max_f32 v9, v8, v9
    v_add_f32 v2, v2, v3
    v_mov_b32 v8, v9
    v_add_f32 v4, v4, v5
    v_pk_add_f32 {vr(B,2)}, {vr(B,2)}, {vr(B+4,2)}
    v_permlane32_swap_b32 v8, v9
    v_pk_add_f32 {vr(B+2,2)}, {vr(B+2,2)}, {vr(B+6,2)}
    v_pk_add_f32 {vr(B+8,2)}, {vr(B+8,2)}, {vr(B+12,2)}
    v_max_f32 v9, v8, v9
    v_mul_f32 v2, v2, v9
    v_mul_f32 v4, v4, v9
    v_sqrt_f32 v2, v2
    v_sqrt_f32 v4, v4
    v_mul_f32 v2, {f2u(-1.02):#x}, v2
    v_mul_f32 v{A_M1}, {f2u(-1.02):#x}, v4
    v_min_f32 v3, v2, v{A_M1}
    v_cmp_o_f32 s[{S_SAVE}:{S_SAVE+1}], v2, v{A_M1}
    v_cmp_le_f32 vcc, {f2u(-BOUND_T):#x}, v3
    s_and_b64 vcc, vcc, s[{S_SAVE}:{S_SAVE+1}]
    s_cmp_eq_u64 vcc, exec
    s_cbranch_scc0 L_slow
    L_slow_done:
    v_mov_b32 v3, v2""")
    for i in range(0, 16, 2):
        a(f"v_mov_b64 {vr(A_C+i,2)}, v[2:3]")
    a(f"""v_pk_add_f32 {vr(B+10,2)}, {vr(B+10,2)}, {vr(B+14,2)}
    s_waitcnt lgkmcnt(2)
    v_mfma_f32_32x32x16_bf16 {vr(A_S0,16)}, {vr(A_K,4)}, {vr(A_Q0,4)}, {vr(A_C,16)}
    ds_read_b128 {vr(A_K,4)}, v{A_ADDR} offset:4096""")
    for c, (U, Y, K) in enumerate(((B+16, B, S_K0), (B+18, B+8, S_K1))):
        a(f"""v_lshlrev_b32 v4, 16, v{U}
        v_and_b32 v5, 0xffff0000, v{U}
        v_lshlrev_b32 v6, 16, v{U+1}
        v_and_b32 v7, 0xffff0000, v{U+1}
        v_fmac_f32 v{Y}, s{K}, v4
        v_fmac_f32 v{Y+1}, s{K}, v5
        v_fmac_f32 v{Y+2}, s{K}, v6
        v_fmac_f32 v{Y+3}, s{K}, v7""")
    for e in range(4):
        a(f"v_cvt_pk_bf16_f32 v{A_Y+e}, v{B+e}, v{B+8+e}")


def at_slow(a):
    lp = a.label("mxl")
    a(f"""L_slow:
    s_mov_b32 s{S_T0}, {WS_KV}
    s_mov_b32 s{S_CNT}, 64
    v_mov_b32 v2, 0xff800000
    v_mov_b32 v{A_M1}, 0xff800000
    {lp}:
    buffer_load_dwordx4 v[4:7], v{V_L16}, {sr(R_WS,4)}, s{S_T0} offen {SC}
    s_add_u32 s{S_T0}, s{S_T0}, 2048
    s_waitcnt vmcnt(0)
    v_mfma_f32_32x32x16_bf16 {vr(A_S0,16)}, v[4:7], {vr(A_Q0,4)}, 0
    v_mfma_f32_32x32x16_bf16 {vr(A_S1,16)}, v[4:7], {vr(A_Q1,4)}, 0
    s_nop 15""")
    for i in range(0, 16, 2):
        a(f"v_max3_f32 v2, v2, v{A_S0+i}, v{A_S0+i+1}")
    for i in range(0, 16, 2):
        a(f"v_max3_f32 v{A_M1}, v{A_M1}, v{A_S1+i}, v{A_S1+i+1}")
    a(f"""s_sub_u32 s{S_CNT}, s{S_CNT}, 1
    s_cmp_lg_u32 s{S_CNT}, 0
    s_cbranch_scc1 {lp}
    v_mov_b32 v3, v2
    v_mov_b32 v4, v{A_M1}
    s_nop 1
    v_permlane32_swap_b32 v2, v3
    v_permlane32_swap_b32 v{A_M1}, v4
    s_nop 1
    v_max_f32 v2, v2, v3
    v_max_f32 v{A_M1}, v{A_M1}, v4
    v_sub_f32 v2, 0, v2
    v_sub_f32 v{A_M1}, 0, v{A_M1}
    s_branch L_slow_done""")


def attention(a):
    NS = 64
    EARLY = OPT["early"]
    ins = {s: {k: [] for k in "ABCZ"} for s in range(NS + 1)}
    T = {}
    def add(s, slot, fn): ins[s][slot].append(fn)

    a.c("late KV: wave v loads (step = 2j + (v>>2), kappa = (v>>1)&1, part = v&1)")
    a(f"""s_lshl_b32 s{S_T0}, s{S_KAP}, 11
    s_bfe_u32 s{S_T1}, s{S_WAVE}, 0x10001
    s_lshl_b32 s{S_T1}, s{S_T1}, 16
    s_add_u32 s{S_T0}, s{S_T0}, s{S_T1}
    s_and_b32 s{S_T1}, s{S_WAVE}, 1
    s_lshl_b32 s{S_T1}, s{S_T1}, 10
    s_add_u32 s{S_T0}, s{S_T0}, s{S_T1}
    s_add_u32 s{S_W1}, s{S_T0}, {WS_KV + EARLY*2048}
    s_lshl_b32 s{S_W0}, s{S_WAVE}, 13
    s_add_u32 s{S_W0}, s{S_W0}, {WS_WT}""")
    NL = (32 - EARLY) // 2
    def kvdma(j):
        def f():
            a(f"s_add_u32 m0, s{S_M0}, {L_KV + EARLY*4096 + j*8192}\ns_nop 0")
            T[("kv", j)] = a.vm(f"buffer_load_dwordx4 v{V_L16}, {sr(R_WS,4)}, s{S_W1} offen {SC} lds")
            a(f"s_add_u32 s{S_W1}, s{S_W1}, 4096")
        return f
    for j in range(NL):
        add(j, "B", kvdma(j))
    j = 0
    while j < NL:
        bs = EARLY + 2*j - 3
        jm = min(NL - 1, bs - 3)
        assert jm >= j
        add(bs, "A", (lambda jm=jm: (a.wait_v(T[("kv", jm)]), a("s_barrier"))))
        j = jm + 1
    for e in range(4):
        for w in range(8):
            st = 8*e + w if e < 3 else 8*e + w//2
            def f(e=e, w=w):
                lab = a.label("sc")
                a(f"""s_cmp_lg_u32 s{S_WAVE}, {w}
                s_cbranch_scc1 {lab}
                buffer_store_dword v{A_Y+e}, v{A_YA}, {sr(R_OUT,4)}, s{S_Y0} offen offset:{2048*(e&1)}
                {lab}:""")
                if e == 1 and w == 7: a(f"s_add_u32 s{S_Y0}, s{S_Y0}, 4096")
            add(st, "Z", f)
    def wload(r, i):
        def f():
            t4, half, j = i // 8, (i // 4) % 2, i % 4
            reg = A_W + t4*32 + half*16 + j*4
            T[("w", r, i)] = a.vm(f"buffer_load_dwordx4 {vr(reg,4)}, v{V_L16}, {sr(R_WS,4)}, s{S_W0} offen offset:{1024*j} {SC}")
            if j == 3: a(f"s_add_u32 s{S_W0}, s{S_W0}, {4096 if half == 0 else 65536 - 4096}")
        return f
    def spread(r, s0, s1, both):
        slots = []
        for s in range(s0, s1):
            if both(s): slots.append((s, "B"))
            slots.append((s, "C"))
        assert len(slots) >= 32, len(slots)
        for i in range(32):
            s, sl = slots[(i * len(slots)) // 32]
            add(s, sl, wload(r, i))
    spread(0, 6, 34, lambda s: s >= NL)
    def crew():
        a(f"v_mov_b32 v2, v{A_M1}\nv_mov_b32 v3, v{A_M1}")
        for i in range(0, 16, 2): a(f"v_mov_b64 {vr(A_C+i,2)}, v[2:3]")
    add(30, "C", crew)
    def fl_addr():
        a(f"""s_mul_i32 s{S_T0}, s{S_WAVE}, 2304
        s_add_u32 s{S_T0}, s{S_T0}, {L_XB}
        v_add_u32 v2, s{S_T0}, v{V_L16}
        v_lshl_add_u32 v3, v1, 2, s{S_T0}""")
    def fl_write():
        a.lds(f"ds_write_b128 v2, {vr(A_O,4)}")
        a.lds(f"ds_write_b128 v2, {vr(A_O+4,4)} offset:1024")
        T["fl"] = a.lds(f"ds_write_b32 v3, v{A_O+8} offset:2048")
    def o_zero():
        for i in range(0, 10, 2): a(f"v_mov_b64 {vr(A_O+i,2)}, 0")
    def fin_read(rnd):
        a(f"""s_and_b32 s{S_T0}, s{S_WAVE}, 3
        s_mul_i32 s{S_T1}, s{S_T0}, 2304
        s_add_u32 s{S_T1}, s{S_T1}, {L_XB}
        s_lshl_b32 s{S_T2}, s{S_KAP}, 10
        s_add_u32 s{S_T2}, s{S_T2}, s{S_T1}
        v_add_u32 v2, s{S_T2}, v{V_L16}
        v_lshl_add_u32 v3, v1, 2, s{S_T1}""")
        a.wait_l(T["fl"])
        a("s_barrier")
        a.lds(f"ds_read_b32 v8, v3 offset:2048")
        a.lds(f"ds_read_b32 v9, v3 offset:{2048 + 4*2304}")
        a.lds(f"ds_read_b128 v[4:7], v2")
        T["fin"] = a.lds(f"ds_read_b128 {vr(A_AF,4)}, v2 offset:{4*2304}")
        a(f"""v_and_b32 v2, 31, v1
        v_lshlrev_b32 v2, 5, v2
        v_lshrrev_b32 v3, 5, v1
        v_lshl_add_u32 v2, v3, 4, v2
        s_lshl_b32 s{S_T0}, s{S_T0}, 10
        s_lshl_b32 s{S_T1}, s{S_KAP}, 3
        s_add_u32 s{S_T0}, s{S_T0}, s{S_T1}
        s_add_u32 s{S_T0}, s{S_T0}, {L_OA + rnd*4096}
        v_add_u32 v2, s{S_T0}, v2""")
    def fin_math():
        a.wait_l(T["fin"])
        a(f"""v_add_f32 v8, v8, v9
        v_rcp_f32 v8, v8
        v_pk_add_f32 v[4:5], v[4:5], {vr(A_AF,2)}
        v_pk_add_f32 v[6:7], v[6:7], {vr(A_AF+2,2)}
        v_pk_mul_f32 v[4:5], v[4:5], v[8:9] op_sel_hi:[1,0]
        v_pk_mul_f32 v[6:7], v[6:7], v[8:9] op_sel_hi:[1,0]
        v_cvt_pk_bf16_f32 v4, v4, v5
        v_cvt_pk_bf16_f32 v5, v6, v7""")
        T["oa"] = a.lds(f"ds_write_b64 v2, v[4:5]")
    add(32, "A", fl_addr)
    add(32, "C", lambda: (fl_write(), o_zero()))
    add(34, "A", lambda: fin_read(0))
    add(34, "C", fin_math)
    PJ = 36
    def pj_begin():
        a(f"v_add_u32 v2, {L_OA}, v{V_L16}")
        a.wait_l(T["oa"])
        a("s_barrier")
        T[("af", 0)] = a.lds(f"ds_read_b128 {vr(A_AF,4)}, v2")
        T[("af", 1)] = a.lds(f"ds_read_b128 v[4:7], v2 offset:1024")
    add(PJ, "A", pj_begin)
    for t4 in range(4):
        F = A_AF if t4 % 2 == 0 else 4
        def sm(t4, F, cts):
            def f():
                a.wait_l(T[("af", t4)])
                a.wait_v(T[("w", 0, t4*8 + 7)])
                for ct in cts:
                    a(f"v_smfmac_f32_16x16x64_bf16 {vr(A_ACC+4*ct,4)}, {vr(F,4)}, {vr(A_W + t4*32 + ct*8, 8)}, v{A_IDX2}")
            return f
        add(PJ + t4, "B", sm(t4, F, (0, 1)))
        add(PJ + t4, "C", sm(t4, F, (2, 3)))
        if t4 + 2 < 4:
            def rd(t4=t4, F=F):
                T[("af", t4 + 2)] = a.lds(f"ds_read_b128 {vr(F,4)}, v2 offset:{1024*(t4+2)}")
            add(PJ + t4 + 1, "A", rd)
    spread(1, PJ + 1, 61, lambda s: s >= PJ + 4)
    ep_store = f"""v_mov_b32 v2, 0
    v_mov_b32 v3, s{S_TAG}
    s_mov_b32 s{S_T0}, {WS_EP}
    s_mov_b64 exec, 1
    buffer_store_dword v3, v2, {sr(R_WS,4)}, s{S_T0} offen {SC}
    s_mov_b64 exec, -1"""
    add(20, "A", lambda: a(f"""s_or_b32 s{S_T0}, s2, s{S_WAVE}
    s_or_b32 s{S_T0}, s{S_T0}, s{S_FB}
    s_cmp_lg_u32 s{S_T0}, 0
    s_cbranch_scc1 L_noep0
    {ep_store}
    L_noep0:"""))
    def ep_load():
        a(f"v_mov_b32 v{A_M1}, {WS_EP}")
        T["ep"] = a.vm(f"buffer_load_dword v{A_M1}, v{A_M1}, {sr(R_WS,4)}, 0 offen {SC}")
    add(58, "Z", ep_load)

    a.reset(); a.nl = 3
    tK = 3; tV = 2
    a(f"""v_exp_f32 v{A_S0}, v{A_S0}
    v_exp_f32 v{A_S0+1}, v{A_S0+1}""")
    a.stamp("r0start")
    a(".p2align 3")
    for s in range(NS):
        S, Sn = (A_S0, A_S1) if s % 2 == 0 else (A_S1, A_S0)
        Vc, Vn = (A_V0, A_V1) if s % 2 == 0 else (A_V1, A_V0)
        last = s == NS - 1
        def E(R, i):
            if i == OPT["prio_lo"]: a("s_setprio 0")
            if i == OPT["prio_hi"]: a("s_setprio 1")
            a(f"v_exp_f32 v{R+i}, v{R+i}")
        off = lambda step: (step % 16) * 4096
        a.c(f"step {s}")
        if (s + 1) % 16 == 0 and not last:
            a(f"v_mov_b32 v{A_ADDR}, v0")
        tVc = tV
        if not last:
            a(f"s_mov_b64 exec, {sr(S_VMASK,2)}")
            a.lds(f"ds_read_b128 {vr(Vn,4)}, v{A_ADDR} offset:{off(s+1) + 1024}")
            tV = a.lds(f"ds_read_b128 {vr(Vn+4,4)}, v{A_ADDR} offset:{off(s+1) + 1280}")
            a("s_mov_b64 exec, -1")
        E(S, 2); E(S, 3)
        a.wait_l(max(tK, tVc))
        for f in ins[s]["A"]: f()
        E(S, 4)
        if not last:
            Q = A_Q0 if s + 1 < 32 else A_Q1
            a(f"v_mfma_f32_32x32x16_bf16 {vr(Sn,16)}, {vr(A_K,4)}, {vr(Q,4)}, {vr(A_C,16)}")
            if s + 2 < NS:
                if (s + 2) % 16 == 0:
                    a(f"v_xor_b32 v0, 0x10000, v{A_ADDR}")
                    tK = a.lds(f"ds_read_b128 {vr(A_K,4)}, v0 offset:{off(s+2)}")
                else:
                    tK = a.lds(f"ds_read_b128 {vr(A_K,4)}, v{A_ADDR} offset:{off(s+2)}")
        for i in range(5, 9): E(S, i)
        for f in ins[s]["B"]: f()
        E(S, 9); E(S, 10)
        pvlo = f"v_smfmac_f32_32x32x32_bf16 {vr(A_O,16)}, {vr(Vc,4)}, {vr(S,8)}, v{A_IDX}"
        if s != 32: a(pvlo)
        for i in range(11, 14): E(S, i)
        for f in ins[s]["C"]: f()
        E(S, 14); E(S, 15)
        if s == 32: a(pvlo)
        for f in ins[s]["Z"]: f()
        if not last:
            E(Sn, 0); E(Sn, 1)
        else:
            fl_addr()
        a(f"v_smfmac_f32_32x32x32_bf16 {vr(A_O,16)}, {vr(Vc+4,4)}, {vr(S+8,8)}, v{A_IDX}")
        if s in (15, 31, 47): a.stamp(f"step{s}")
    a.stamp("r1end")
    a("s_setprio 0\ns_nop 10")
    fl_write()
    fin_read(1)
    fin_math()
    a(f"v_add_u32 v2, {L_OA + 4096}, v{V_L16}")
    a.wait_l(T["oa"])
    a("s_barrier")
    a.stamp("fin1")
    FR = [A_AF, 4, A_S0, A_S0 + 4]
    tk = [a.lds(f"ds_read_b128 {vr(FR[t4],4)}, v2 offset:{1024*t4}") for t4 in range(4)]
    a(f"""v_lshrrev_b32 v2, 4, v1
    v_lshlrev_b32 v2, 12, v2
    v_and_b32 v3, 15, v1
    v_lshl_add_u32 v2, v3, 3, v2
    s_lshl_b32 s{S_T0}, s{S_LIN}, 14
    s_lshl_b32 s{S_T1}, s{S_WAVE}, 7
    s_add_u32 s{S_T0}, s{S_T0}, s{S_T1}
    s_waitcnt vmcnt(0)
    v_readfirstlane_b32 s{S_T1}, v{A_M1}""")
    for t4 in range(4):
        a.wait_l(tk[t4])
        for ct in range(4):
            a(f"v_smfmac_f32_16x16x64_bf16 {vr(A_ACC+4*ct,4)}, {vr(FR[t4],4)}, {vr(A_W + t4*32 + ct*8, 8)}, v{A_IDX2}")
    a("s_nop 4")
    for ct in range(4):
        a(f"""v_add_f32 v{A_ACC+4*ct}, v{A_ACC+4*ct}, v{A_ACC+4*ct+1}
        v_add_f32 v{A_ACC+4*ct+2}, v{A_ACC+4*ct+2}, v{A_ACC+4*ct+3}""")
    a(f"""v_cvt_pk_bf16_f32 v4, v{A_ACC}, v{A_ACC+4}
    v_cvt_pk_bf16_f32 v5, v{A_ACC+8}, v{A_ACC+12}
    v_cvt_pk_bf16_f32 v6, v{A_ACC+2}, v{A_ACC+6}
    v_cvt_pk_bf16_f32 v7, v{A_ACC+10}, v{A_ACC+14}
    buffer_store_dwordx2 v[4:5], v2, {sr(R_OUT,4)}, s{S_T0} offen offset:1024
    buffer_store_dwordx2 v[6:7], v2, {sr(R_OUT,4)}, s{S_T0} offen offset:3072
    s_or_b32 s{S_T0}, s{S_WAVE}, s{S_FB}
    s_cmp_lg_u32 s{S_T0}, 0
    s_cbranch_scc1 L_noep1
    s_cmp_eq_u32 s{S_T1}, s{S_TAG}
    s_cbranch_scc1 L_noep1
    {ep_store}
    L_noep1:""")


def build():
    a = Asm()
    if OPT["diag"]:
        a(f"v_mov_b32 v{V_STAMP}, 0")
    a.stamp("start")
    prologue(a)
    a("L_phase1:")
    round1(a)
    a.stamp("iss1")
    precompute(a)
    a.stamp("pre")
    a("s_waitcnt vmcnt(0)")
    a.stamp("land1")
    round2(a)
    a("s_barrier")
    a.stamp("B0")
    phase_u(a)
    g_pair(a, 0)
    a.stamp("g0")
    kg_valu(a)
    a.stamp("kgv")
    a("s_waitcnt vmcnt(0) lgkmcnt(0)\ns_barrier")
    a.stamp("B1")
    dma_pair(a, 2)
    a(f"""v_readfirstlane_b32 s{S_TAG}, v{V_EP}
    s_mul_i32 s{S_TAG}, s{S_TAG}, 0x0019660d
    s_add_u32 s{S_TAG}, s{S_TAG}, 0x3c6ef35f""")
    if OPT["force_fb"]:
        a(f"s_add_u32 s{S_TAG}, s{S_TAG}, s2")
    signal_a(a, 4)
    phase_wt(a)
    g_pair(a, 1)
    kg_mfma(a)
    a.stamp("kgm")
    a("s_waitcnt vmcnt(0)\ns_barrier")
    a.stamp("B2")
    dma_pair(a, 3)
    g_pair(a, 2)
    kg_copy0(a)
    a.stamp("c0")
    a("s_waitcnt vmcnt(0) lgkmcnt(0)\ns_barrier")
    a.stamp("B3")
    poll_a_issue(a)
    kg_expand_read(a)
    g_pair(a, 3)
    a.c("fallback mode: this workgroup produces every task's output itself")
    a(f"""s_cmp_eq_u32 s{S_FB}, 0
    s_cbranch_scc1 L_p1done""")
    g_epilogue(a)
    a(f"""s_add_u32 s{S_TASK}, s{S_TASK}, 1
    s_cmp_lt_u32 s{S_TASK}, 256
    s_waitcnt vmcnt(0)
    s_barrier
    v_and_b32 v2, 255, v0
    v_lshlrev_b32 v2, 1, v2
    s_lshl_b32 s{S_T0}, s{S_LIN}, 9
    v_add_u32 v9, s{S_T0}, v2
    s_cmp_lt_u32 s{S_TASK}, 256
    s_cbranch_scc1 L_phase1
    s_mov_b32 s{S_TASK}, 255
    L_p1done:""")
    poll_a_check_and_load_u(a)
    g_epilogue(a)
    a.stamp("gepi")
    kg_expand(a)
    to_record(a)
    a.c("u rows landed: younger stores = 1 (Q), KV wave up to 3")
    a(f"""s_cmp_eq_u32 s{S_WAVE}, {KV_WAVE}
    s_waitcnt vmcnt(2)
    s_cbranch_scc1 L_uok
    s_waitcnt vmcnt(1)
    L_uok:
    ds_write_b128 v{URW}, {vr(UR_LD,4)}
    s_waitcnt lgkmcnt(0)
    s_barrier""")
    a.stamp("B4")
    a(f"""s_cmp_ge_u32 s{S_WAVE}, 4
    s_cbranch_scc1 L_nocv""")
    cv_run(a)
    a(f"""s_branch L_cvdone
    L_nocv:
    {ack_add()}
    s_cmp_lg_u32 s{S_WAVE}, 7
    s_cbranch_scc1 L_cvdone""")
    loader_b(a)
    a("L_cvdone:")
    a.stamp("conv")
    a("s_waitcnt lgkmcnt(0)\ns_barrier")
    a.stamp("B5")
    cv_epilogue_and_shift(a)
    attention(a)
    if OPT["diag"]: a("s_waitcnt vmcnt(0)")
    a.stamp("stored")
    a.stamp_dump()
    a("L_end:\ns_endpgm")
    at_slow(a)
    a(f"""L_fallback:
    s_mov_b32 s{S_FB}, 1
    s_mov_b32 s{S_TOF}, 0
    s_mov_b32 s{S_TASK}, 0
    v_and_b32 v2, 255, v0
    v_lshlrev_b32 v2, 1, v2
    s_lshl_b32 s{S_T0}, s{S_LIN}, 9
    v_add_u32 v9, s{S_T0}, v2
    s_waitcnt vmcnt(0) lgkmcnt(0)
    s_barrier
    s_branch L_phase1
    L_code_end:""")

    hdr = open(f"cdna_kernels/{NAME}.s.ref").read().split("; Override launch")[0]
    kn = NAME + "_kernel"
    out = hdr
    out += f"; @launch grid=(256,1,1) block=(512,1,1) lds={LDS_BYTES}\n"
    out += '.amdgcn_target "amdgcn-amd-amdhsa--gfx950"\n.text\n'
    out += f".globl {kn}\n.p2align 8\n.type {kn},@function\n{kn}:\n" + a.text()
    out += f""".section .rodata,"a"
.p2align 6
.amdhsa_kernel {kn}
  .amdhsa_next_free_vgpr 256
  .amdhsa_next_free_sgpr 100
  .amdhsa_accum_offset 256
  .amdhsa_group_segment_fixed_size 0
  .amdhsa_kernarg_size 136
  .amdhsa_user_sgpr_count 2
  .amdhsa_user_sgpr_kernarg_segment_ptr 1
  .amdhsa_system_sgpr_workgroup_id_x 1
.end_amdhsa_kernel
"""
    return out


if __name__ == "__main__":
    dst = sys.argv[1] if len(sys.argv) > 1 else f"cdna_kernels/{NAME}.s"
    for o in sys.argv[2:]:
        k, _, v = o.partition("=")
        OPT[k] = (int(v) if v.lstrip("-").isdigit() else v) if v else True
    txt = build()
    open(dst, "w").write(txt)
    print("wrote", dst, len(txt), "bytes")
```

```python
import sys, struct, math

NAME = "concat_heads__ssm_conv_s4__grouped_kv_mqa__prompt"
OPT = dict(diag=False, force_fb=False, force_slow=False, prio_lo=0, prio_hi=5, prefetch=1, sleep=4, delay=24, early=8, stamps="")

def f2u(x):
    return struct.unpack("<I", struct.pack("<f", x))[0]

WS_QF = 0
WS_UT = 2 << 20
WS_WT = 4 << 20
WS_KV = WS_WT + (512 << 10)
WS_FA = WS_KV + (128 << 10)
WS_FB = WS_FA + 32768
WS_EP = WS_FB + 2048
WS_ABN = WS_EP + 128
WS_FC = WS_EP + 1024
WS_YT = 5 << 20
WS_SIZE = WS_YT + (2 << 20)
WS_DIAG = 8 << 20

L_G = 0
L_XY = 65536
XY_ROW = 544
XY_CH = 32 * XY_ROW
L_X = L_XY
L_Y = L_XY + 2 * XY_CH
L_WKV = 135168
L_UTILE = 151552
L_K0 = 151552
L_WOT = 161792
KC_COPY = 4160
KC_CH = 4 * KC_COPY
L_QS = 0
L_TO = 8192
L_NRM = 12288
L_UR = 16896
L_KC = 32256
L_PB = 131072
KV_X = 0x10000
L_XB = 131072
L_OA = L_XB + 8 * 2304
L_YT = L_OA
L_CNT = L_OA + 8192
LDS_BYTES = 163840

S_U, S_ARE, S_AIM, S_BRE, S_BIM, S_CRE, S_CIM, S_LDT = 16, 18, 20, 22, 24, 26, 28, 30
S_DSK, S_X, S_WQ, S_WK, S_WV, S_WO, S_OUT, S_DBG, S_WS = 32, 34, 36, 38, 40, 42, 44, 46, 48
R_WS, R_OUT, R_X, R_WQ, R_U, R_WO, R_WKV = 52, 56, 60, 64, 68, 72, 76
S_TASK = 3
S_LIN, S_WAVE, S_RB, S_CB, S_C0 = 4, 5, 6, 7, 8
S_T0, S_T1, S_T2, S_T3 = 9, 10, 11, 12
S_CNT = 13
S_VMASK = 14
S_FB = 50
S_TAG = 51
S_PC = 80
S_SAVE = 82
S_DT, S_DS = 84, 85
S_K0, S_K1 = 86, 87
S_W0, S_W1 = 88, 89
S_KAP = 90
S_TOF = 91
S_M0 = 92
S_Y0 = 93
S_M1 = 100
S_ST = 101
S_KVW = 82
S_LTO = 83
S_XO, S_WO_ = 98, 99
SC = "sc1"
SPIN_MAX = 20000

V_STAMP = 10
V_EP = 11
A_M1 = 11
A_IDX, A_IDX2, A_ADDR, V_L16 = 12, 13, 14, 15
A_S0, A_S1, A_O, A_C = 16, 32, 48, 64
A_K, A_AF, A_V0, A_V1, A_Q0, A_Q1, A_ACC, A_W = 80, 84, 88, 96, 104, 108, 112, 128
YV, YTR, YPW, YST, FCO = 251, 252, 253, 254, 255
(GX, GW, GA, GB0, GB1, GKX0, GKX1, GKW, KGX, KGY, XYW, UA, US, QS, C0A, SL0, SL1, SL2, SL3,
 ZA, EXA, URL, URW, CVB, CVA, PBW, EXR, FAO, KVS, QRD) = range(16, 46)
HX0, HX1, HW0, HW1 = 58, 59, 60, 61
V_FA, V_NQ, V_NK = 82, 85, 86
PBR, EPU = 249, 250
G_ACC, G_ACCK, G_ACCV = 128, 128, 132
G_FR = 144
KG_D = 104
UR_LD = 144
KGP = 192
KG = 200
EX = 208
CV_ACC = 128
CV_FR = 192
KV_WAVE = 4
BOUND_T = 60.0


def vr(a, n): return f"v[{a}:{a+n-1}]"
def sr(a, n): return f"s[{a}:{a+n-1}]"


class Asm:
    def __init__(self):
        self.lines = []
        self.uid = 0
        self.stamp_names = []
        self.late = []
        self.nl = 0; self.dl = 0
        self.nv = 0; self.dv = 0
    def __call__(self, s):
        for ln in s.split("\n"):
            ln = ln.strip()
            if ln:
                self.lines.append(("" if ln.endswith(":") else "    ") + ln)
    def c(self, s):
        self.lines.append("    ; " + s)
    def label(self, base):
        self.uid += 1
        return f"L_{base}_{self.uid}"
    def text(self):
        return "\n".join(self.lines) + "\n"
    def reset(self):
        self.nl = self.dl = self.nv = self.dv = 0
    def lds(self, s):
        self(s); self.nl += 1; return self.nl
    def vm(self, s):
        self(s); self.nv += 1; return self.nv
    def wait_l(self, tok):
        if tok > self.dl:
            n = min(self.nl - tok, 15)
            self(f"s_waitcnt lgkmcnt({n})"); self.dl = self.nl - n
    def wait_v(self, tok):
        if tok > self.dv:
            n = min(self.nv - tok, 63)
            self(f"s_waitcnt vmcnt({n})"); self.dv = self.nv - n
    def stamp(self, name):
        if OPT.get("probe"):
            if name == "start":
                self("s_memrealtime s[94:95]\ns_memrealtime s[96:97]\ns_waitcnt lgkmcnt(0)")
            elif name == OPT["probe"]:
                self("s_memrealtime s[96:97]\ns_waitcnt lgkmcnt(0)")
            if name == "stored":
                self(f"""s_memrealtime s[16:17]
                s_waitcnt lgkmcnt(0)
                s_sub_u32 s96, s96, s94
                s_mul_i32 s96, s96, 4
                s_add_u32 s96, s96, s16
                L_probe_spin:
                s_memrealtime s[16:17]
                s_waitcnt lgkmcnt(0)
                s_sub_u32 s16, s16, s96
                s_cmp_lt_i32 s16, 0
                s_cbranch_scc1 L_probe_spin""")
            return
        if not OPT["diag"]:
            return
        if OPT["stamps"] and name not in OPT["stamps"].split("+") + ["start", "stored"]:
            return
        if name in self.stamp_names:
            i = self.stamp_names.index(name)
        else:
            i = len(self.stamp_names); self.stamp_names.append(name)
        assert i < 32
        self(f"""s_memtime s[94:95]
        s_memrealtime s[96:97]
        s_waitcnt lgkmcnt(0)
        v_writelane_b32 v{V_STAMP}, s94, {i}
        v_writelane_b32 v{V_STAMP}, s96, {i+32}""")
    def stamp_dump(self):
        if not OPT["diag"]:
            return
        self(f"""v_lshlrev_b32 v3, 2, v1
        s_lshl_b32 s{S_T0}, s2, 3
        s_add_u32 s{S_T0}, s{S_T0}, s{S_WAVE}
        s_lshl_b32 s{S_T0}, s{S_T0}, 8
        s_add_u32 s{S_T0}, s{S_T0}, {WS_DIAG}
        s_mov_b32 s{R_WS+2}, {WS_DIAG + (4<<20)}
        buffer_store_dword v{V_STAMP}, v3, {sr(R_WS,4)}, s{S_T0} offen""")
        self.lines.append(f"; STAMPS 0 " + ",".join(self.stamp_names))


def srd(a, R, P, size):
    a(f"""s_mov_b32 s{R}, s{P}
    s_mov_b32 s{R+1}, s{P+1}
    s_mov_b32 s{R+2}, {size:#x}
    s_mov_b32 s{R+3}, 0x00020000""")


def SEL(lo, hi):
    return (2*lo) | ((2*lo+1) << 8) | ((2*hi) << 16) | ((2*hi+1) << 24)


def prologue(a):
    a(f"""s_cmp_ge_u32 s2, 256
    s_cbranch_scc1 L_end
    s_load_dwordx16 s[16:31], s[0:1], 0
    s_load_dwordx16 s[32:47], s[0:1], 64
    s_load_dwordx2 s[48:49], s[0:1], 128""")
    if OPT["prefetch"]:
        a.c("pull the kernel's own code into L2 (instruction fetch is slow from cold memory):")
        a.c("every 8th line, phase = (wg>>3)&7")
        sk = a.label("nopf")
        a(f"""s_getpc_b64 {sr(S_PC,2)}
        L_pc_ref:
        s_bfe_u32 s{S_T0}, s2, 0x30003
        v_lshl_add_u32 v2, v0, 3, s{S_T0}
        v_lshlrev_b32 v2, 7, v2
        v_cmp_gt_u32 vcc, (L_code_end - L_pc_ref), v2
        s_and_saveexec_b64 {sr(S_SAVE,2)}, vcc
        s_cbranch_execz {sk}
        global_load_dword v248, v2, {sr(S_PC,2)}
        {sk}:
        s_mov_b64 exec, -1""")
    a(f"""s_and_b32 s{S_T0}, s2, 7
    s_lshl_b32 s{S_T0}, s{S_T0}, 5
    s_lshr_b32 s{S_T1}, s2, 3
    s_add_u32 s{S_LIN}, s{S_T0}, s{S_T1}
    s_mov_b32 s{S_TASK}, s{S_LIN}
    s_mov_b32 s{S_FB}, 0
    s_mov_b32 s{S_TOF}, 0
    v_lshrrev_b32 v2, 6, v0
    v_and_b32 v1, 63, v0
    v_readfirstlane_b32 s{S_WAVE}, v2
    v_lshlrev_b32 v{V_L16}, 4, v1""")
    a.c("DMA source offsets (16 rows per wave, 2 instructions): x piece ^ (row>>1)&7 ; w piece ^ ((row&2)<<1 | (row>>3&1)<<1)")
    a(f"""v_and_b32 v4, 7, v0
    v_lshrrev_b32 v3, 3, v1
    s_and_b32 s{S_T2}, s{S_WAVE}, 3
    s_lshl_b32 s{S_T2}, s{S_T2}, 14
    v_lshrrev_b32 v5, 1, v3
    v_xor_b32 v5, v5, v4
    v_lshlrev_b32 v5, 4, v5
    v_lshl_add_u32 v5, v3, 10, v5
    v_add_u32 v{HX0}, s{S_T2}, v5
    v_and_b32 v5, 2, v3
    v_lshlrev_b32 v5, 1, v5
    v_xor_b32 v5, v5, v4
    v_lshlrev_b32 v5, 4, v5
    v_lshl_add_u32 v5, v3, 10, v5
    v_add_u32 v{HW0}, s{S_T2}, v5
    v_xor_b32 v{HX1}, 0x2040, v{HX0}
    v_xor_b32 v{HW1}, 0x2020, v{HW0}
    s_lshr_b32 s{S_M1}, s{S_T2}, 3
    v_and_b32 v2, 255, v0
    v_lshlrev_b32 v2, 1, v2
    s_lshl_b32 s{S_T0}, s{S_LIN}, 9
    v_add_u32 v9, s{S_T0}, v2
    s_lshl_b32 s{S_M0}, s{S_WAVE}, 10
    s_mov_b32 s{R_WS+2}, {WS_SIZE:#x}
    s_mov_b32 s{R_WS+3}, 0x00020000
    s_mov_b32 s{R_OUT+2}, {4<<20:#x}
    s_mov_b32 s{R_OUT+3}, 0x00020000
    s_mov_b32 s{R_X+2}, {2<<20:#x}
    s_mov_b32 s{R_X+3}, 0x00020000
    s_mov_b32 s{R_WQ+2}, {512<<10:#x}
    s_mov_b32 s{R_WQ+3}, 0x00020000
    s_mov_b32 s{R_U+2}, {2<<20:#x}
    s_mov_b32 s{R_U+3}, 0x00020000
    s_mov_b32 s{R_WO+2}, {512<<10:#x}
    s_mov_b32 s{R_WO+3}, 0x00020000
    s_mov_b32 s{R_WKV+2}, 0x4000
    s_mov_b32 s{R_WKV+3}, 0x00020000
    s_lshl_b32 s{S_T0}, s{S_LIN}, 2
    s_waitcnt lgkmcnt(0)
    s_load_dword s{S_DT}, {sr(S_LDT,2)}, s{S_T0}
    s_load_dword s{S_DS}, {sr(S_DSK,2)}, s{S_T0}
    s_mov_b64 {sr(R_U,2)}, {sr(S_U,2)}
    s_mov_b64 {sr(R_X,2)}, {sr(S_X,2)}
    s_mov_b64 {sr(R_WQ,2)}, {sr(S_WQ,2)}
    s_mov_b64 {sr(R_WS,2)}, {sr(S_WS,2)}
    s_mov_b64 {sr(R_OUT,2)}, {sr(S_OUT,2)}
    s_mov_b64 {sr(R_WO,2)}, {sr(S_WO,2)}""")


def dma_x(a, pos):
    a(f"""s_add_u32 s{S_T0}, s{S_C0}, {pos}
    s_and_b32 s{S_T0}, s{S_T0}, 7
    s_lshl_b32 s{S_T0}, s{S_T0}, 7
    s_add_u32 m0, s{S_M0}, {L_G + pos*16384}
    s_add_u32 s{S_T0}, s{S_T0}, s{S_XO}
    buffer_load_dwordx4 v{GX}, {sr(R_X,4)}, s{S_T0} offen lds""")

def dma_w(a, pos):
    a(f"""s_add_u32 s{S_T0}, s{S_C0}, {pos}
    s_and_b32 s{S_T0}, s{S_T0}, 7
    s_lshl_b32 s{S_T0}, s{S_T0}, 16
    s_add_u32 m0, s{S_M0}, {L_G + pos*16384 + 8192}
    s_add_u32 s{S_T0}, s{S_T0}, s{S_WO_}
    buffer_load_dwordx4 v{GW}, {sr(R_WQ,4)}, s{S_T0} offen lds""")

def dma2(kind, pos):
    sh, base, R, r0, lo = (7, S_XO, R_X, HX0, 0) if kind == "x" else (16, S_WO_, R_WQ, HW0, 8192)
    return f"""s_add_u32 s{S_T3}, s{S_C0}, {pos}
    s_and_b32 s{S_T3}, s{S_T3}, 7
    s_lshl_b32 s{S_T3}, s{S_T3}, {sh}
    s_add_u32 m0, s{S_M1}, {L_G + pos*16384 + lo}
    s_add_u32 s{S_T3}, s{S_T3}, s{base}
    buffer_load_dwordx4 v{r0}, {sr(R,4)}, s{S_T3} offen lds
    s_add_u32 m0, s{S_M1}, {L_G + pos*16384 + lo + 1024}
    s_nop 0
    buffer_load_dwordx4 v{r0+1}, {sr(R,4)}, s{S_T3} offen lds"""

def dma_wkv(a):
    a(f"""s_add_u32 s{S_T0}, s{S_C0}, s{S_WAVE}
    s_and_b32 s{S_T0}, s{S_T0}, 7
    s_lshl_b32 s{S_T1}, s{S_M0}, 1
    s_add_u32 m0, s{S_T1}, {L_WKV}
    s_lshl_b32 s{S_T0}, s{S_T0}, 11
    buffer_load_dwordx4 v{V_L16}, {sr(R_WKV,4)}, s{S_T0} offen lds
    buffer_load_dwordx4 v{V_L16}, {sr(R_WKV,4)}, s{S_T0} offen offset:1024 lds""")


def round1(a):
    ly = a.label("r1y"); le = a.label("r1e"); l1 = a.label("r1w")
    a(f"""global_load_ushort v{KGP}, v9, {sr(S_ARE,2)}
    global_load_ushort v{KGP+1}, v9, {sr(S_AIM,2)}
    v_mov_b32 v2, {WS_EP}
    buffer_load_dword v{V_EP}, v2, {sr(R_WS,4)}, 0 offen {SC}
    s_lshr_b32 s{S_RB}, s{S_TASK}, 3
    s_and_b32 s{S_CB}, s{S_TASK}, 7
    s_lshl_b32 s{S_T0}, s{S_RB}, 1
    s_add_u32 s{S_C0}, s{S_T0}, s{S_CB}
    s_and_b32 s{S_C0}, s{S_C0}, 7
    s_lshl_b32 s{S_XO}, s{S_RB}, 16
    s_lshl_b32 s{S_WO_}, s{S_CB}, 7
    s_cmp_lt_u32 s{S_WAVE}, 4
    s_cbranch_scc1 {le}
    global_load_ushort v{KGP+2}, v9, {sr(S_BRE,2)}
    global_load_ushort v{KGP+3}, v9, {sr(S_BIM,2)}
    global_load_ushort v{KGP+4}, v9, {sr(S_CRE,2)}
    global_load_ushort v{KGP+5}, v9, {sr(S_CIM,2)}
    s_and_b32 s{S_T0}, s{S_TASK}, 31
    s_lshl_b32 s{S_T0}, s{S_T0}, 16
    s_lshr_b32 s{S_T1}, s{S_TASK}, 5
    s_lshl_b32 s{S_T1}, s{S_T1}, 7
    s_add_u32 m0, s{S_M1}, {L_UTILE}
    s_add_u32 s{S_T0}, s{S_T0}, s{S_T1}
    buffer_load_dwordx4 v{HW0}, {sr(R_U,4)}, s{S_T0} offen lds
    s_add_u32 m0, s{S_M1}, {L_UTILE + 1024}
    s_nop 0
    buffer_load_dwordx4 v{HW1}, {sr(R_U,4)}, s{S_T0} offen lds
    {le}:
    s_bitcmp1_b32 s{S_CB}, 0
    s_cselect_b32 s{R_WKV}, s{S_WV}, s{S_WK}
    s_cselect_b32 s{R_WKV+1}, s{S_WV+1}, s{S_WK+1}""")


def pre_a(a):
    a(f"""v_lshrrev_b32 v2, 4, v1
    v_bfe_u32 v3, v1, 2, 2
    v_and_b32 v4, 3, v1
    v_lshrrev_b32 v7, 5, v1
    v_and_b32 v8, 15, v1
    s_lshr_b32 s{S_KAP}, s{S_WAVE}, 2""")
    a.c("---- u transpose: lane (G, r, c=(quad lsb, octet)) ----")
    a(f"""v_and_b32 v6, 1, v1
    v_and_b32 v5, 2, v3
    v_or_b32 v5, v6, v5
    v_xor_b32 v5, v5, v7
    v_lshlrev_b32 v5, 5, v5
    v_lshl_add_u32 v5, v3, 7, v5
    v_lshl_add_u32 v5, v6, 10, v5
    v_bfe_u32 v6, v1, 1, 1
    v_lshl_add_u32 v5, v6, 3, v5
    v_and_b32 v6, 16, v1
    s_add_u32 s{S_T0}, s{S_M1}, {L_UTILE}
    v_add3_u32 v{UA}, s{S_T0}, v5, v6
    v_lshrrev_b32 v5, 3, v1
    v_lshlrev_b32 v5, 14, v5
    v_and_b32 v6, 7, v1
    v_lshl_add_u32 v{US}, v6, 4, v5""")
    a.c("---- K-gen addresses ----")
    a(f"""v_and_b32 v5, 127, v0
    s_lshr_b32 s{S_T0}, s{S_WAVE}, 1
    s_xor_b32 s{S_T1}, s{S_T0}, 2
    s_mul_i32 s{S_T1}, s{S_T1}, {XY_CH}
    s_add_u32 s{S_T1}, s{S_T1}, {L_XY}
    v_lshl_add_u32 v{XYW}, v5, 2, s{S_T1}
    v_mul_u32_u24 v5, {XY_ROW}, v8
    v_lshl_add_u32 v5, v2, 4, v5
    s_mul_i32 s{S_T1}, s{S_T0}, {16*XY_ROW}
    s_add_u32 s{S_T1}, s{S_T1}, {L_X}
    v_add_u32 v{KGX}, s{S_T1}, v5
    s_lshl_b32 s{S_T1}, s{S_KAP}, 1
    s_and_b32 s{S_T2}, s{S_WAVE}, 1
    s_add_u32 s{S_T1}, s{S_T1}, s{S_T2}
    s_mul_i32 s{S_T1}, s{S_T1}, {16*XY_ROW}
    s_add_u32 s{S_T1}, s{S_T1}, {L_Y}
    v_add_u32 v{KGY}, s{S_T1}, v5""")
    a.c("---- copy0: wave (ch = w>>2, rt = (w>>1)&1, ct = w&1) ----")
    l1 = a.label("rt1"); le = a.label("c0e")
    a(f"""v_lshlrev_b32 v5, 4, v8
    s_mul_i32 s{S_T0}, s{S_KAP}, {KC_COPY}
    s_add_u32 s{S_T0}, s{S_T0}, {L_K0}
    s_lshl_b32 s{S_T2}, s{S_T2}, 8
    s_sub_u32 s{S_T1}, s{S_T0}, s{S_T2}
    v_sub_u32 v{C0A}, s{S_T1}, v5
    v_cmp_le_u32 vcc, 32, v1
    v_and_b32 v6, 1, v2
    v_mov_b32 v{SL3}, {SEL(0,0):#x}
    s_bitcmp1_b32 s{S_WAVE}, 1
    s_cbranch_scc1 {l1}
    v_lshlrev_b32 v5, 9, v7
    v_lshl_add_u32 v5, v6, 3, v5
    v_sub_u32 v{C0A}, v{C0A}, v5
    v_mov_b32 v5, {SEL(3,2):#x}
    v_mov_b32 v6, {SEL(2,1):#x}
    v_cndmask_b32 v{SL0}, v5, v6, vcc
    v_mov_b32 v5, {SEL(1,0):#x}
    v_cndmask_b32 v{SL1}, v5, v{SL3}, vcc
    s_branch {le}
    {l1}:
    v_lshlrev_b32 v6, 9, v6
    v_add_u32 v6, 1024, v6
    v_lshlrev_b32 v6, v7, v6
    v_sub_u32 v{C0A}, v{C0A}, v6
    v_mov_b32 v5, {SEL(2,2):#x}
    v_mov_b32 v6, {SEL(1,1):#x}
    v_cndmask_b32 v{SL0}, v5, v6, vcc
    v_and_b32 v5, 1, v1
    v_mul_u32_u24 v5, 0x202, v5
    v_lshlrev_b32 v5, 16, v5
    v_add_u32 v5, {SEL(1,0):#x}, v5
    v_cndmask_b32 v{SL1}, v6, v5, vcc
    v_mov_b32 v5, {SEL(1,0):#x}
    v_cndmask_b32 v{SL2}, v5, v{SL3}, vcc
    {le}:""")
    a.c("---- projection fragment addresses: compute waves 0..3 (mt = w&1, nt = w>>1); KV wave ----")
    lk = a.label("pk"); lj = a.label("pj")
    a(f"""s_cmp_ge_u32 s{S_WAVE}, 4
    s_cbranch_scc1 {lk}
    v_lshl_add_u32 v5, v7, 3, v3
    v_and_b32 v6, 2, v3
    v_or_b32 v6, v6, v7
    v_and_b32 v3, 1, v2
    s_and_b32 s{S_T0}, s{S_WAVE}, 1
    s_lshl_b32 s{S_T0}, s{S_T0}, 1
    v_or_b32 v3, s{S_T0}, v3
    v_xor_b32 v6, v6, v3
    v_lshlrev_b32 v6, 5, v6
    v_lshl_add_u32 v6, v5, 7, v6
    v_and_b32 v5, 1, v1
    v_lshl_add_u32 v6, v5, 4, v6
    v_bfe_u32 v5, v1, 1, 1
    v_lshl_add_u32 v6, v5, 3, v6
    v_add_u32 v{GA}, 8192, v6
    v_and_b32 v5, 31, v1
    v_bfe_u32 v6, v1, 1, 3
    v_xor_b32 v6, v6, v7
    v_lshlrev_b32 v6, 4, v6
    v_lshl_add_u32 v6, v5, 7, v6
    s_lshr_b32 s{S_T0}, s{S_WAVE}, 1
    s_lshl_b32 s{S_T0}, s{S_T0}, 12
    v_add_u32 v{GB0}, s{S_T0}, v6
    v_xor_b32 v{GB1}, 32, v{GB0}
    v_xor_b32 v{GKX0}, 64, v{GB0}
    v_xor_b32 v{GKX1}, 0x60, v{GB0}
    s_branch {lj}
    {lk}:
    v_lshl_add_u32 v5, v2, 3, v3
    v_lshlrev_b32 v6, 3, v4
    v_lshl_add_u32 v{GA}, v5, 5, v6
    v_add_u32 v{GA}, {L_WKV}, v{GA}
    v_lshrrev_b32 v5, 1, v8
    v_xor_b32 v5, v5, v2
    v_lshlrev_b32 v5, 4, v5
    v_lshl_add_u32 v5, v8, 7, v5
    s_lshr_b32 s{S_T0}, s{S_CB}, 1
    s_lshl_b32 s{S_T0}, s{S_T0}, 11
    v_add_u32 v{GB0}, s{S_T0}, v5
    v_xor_b32 v{GB1}, 64, v{GB0}
    {lj}:""")
    sk = a.label("p0")
    a(f"""s_cmp_ge_u32 s{S_WAVE}, 4
    s_cbranch_scc1 {sk}""")
    if OPT.get("gdelay"): a(f"s_sleep {OPT['gdelay']}")
    a(dma2("x", 0))
    a(f"{sk}:")


def pre_dt(a):
    a.c("---- dt = bf16(exp(log_dt)) of this wave's channel ----")
    LOG2E = math.log2(math.e)
    L_hi = struct.unpack("<f", struct.pack("<f", LOG2E))[0]
    L_lo = LOG2E - L_hi
    a(f"""s_waitcnt lgkmcnt(0)
    s_bitcmp1_b32 s{S_WAVE}, 1
    s_cselect_b32 s{S_T0}, 0, 16
    s_lshl_b32 s{S_T0}, s{S_DT}, s{S_T0}
    s_and_b32 s{S_T0}, s{S_T0}, 0xffff0000
    s_mov_b32 s{S_K0}, {f2u(L_hi):#x}
    v_mov_b32 v2, s{S_T0}
    v_mul_f32 v3, s{S_K0}, v2
    v_fma_f32 v4, v2, s{S_K0}, -v3
    v_fmac_f32 v4, {f2u(L_lo):#x}, v2
    v_exp_f32 v3, v3
    v_mul_f32 v4, {f2u(math.log(2.0)):#x}, v4
    v_fma_f32 v3, v3, v4, v3
    v_cvt_pk_bf16_f32 v3, v3, v3
    v_lshlrev_b32 v{KG+2}, 16, v3""")


def pre_b(a):
    a.c("---- expansion / zero fill / u rows / store offsets ----")
    a(f"""v_and_b32 v5, 255, v0
    s_mul_i32 s{S_T0}, s{S_KAP}, {KC_COPY}
    s_add_u32 s{S_T0}, s{S_T0}, {L_K0}
    v_lshl_add_u32 v{EXR}, v5, 4, s{S_T0}
    s_mul_i32 s{S_T0}, s{S_KAP}, {KC_CH}
    s_add_u32 s{S_T0}, s{S_T0}, {L_KC}
    v_lshl_add_u32 v{EXA}, v5, 4, s{S_T0}
    v_and_b32 v4, 3, v1
    v_lshrrev_b32 v7, 5, v1
    v_lshlrev_b32 v{PBR}, 4, v0
    v_cmp_le_u32 vcc, 160, v0
    v_mov_b32 v5, {96*80 - 2560}
    v_add_u32 v{ZA}, {L_UR}, v{PBR}
    v_cndmask_b32 v5, 0, v5, vcc
    v_add_u32 v{ZA}, v{ZA}, v5
    v_subrev_u32 v5, 320, v0
    v_lshrrev_b32 v6, 2, v5
    v_mul_u32_u24 v6, {KC_COPY}, v6
    v_cmp_le_u32 vcc, 320, v0
    v_lshl_add_u32 v6, v4, 4, v6
    v_add_u32 v6, {L_KC + 4096}, v6
    v_cndmask_b32 v{ZA}, v{ZA}, v6, vcc
    v_cmp_le_u32 vcc, 352, v0
    v_add_u32 v5, {L_TO - 352*16}, v{PBR}
    s_nop 0
    v_cndmask_b32 v{ZA}, v{ZA}, v5, vcc
    v_lshrrev_b32 v5, 1, v1
    v_lshlrev_b32 v5, 6, v5
    v_and_b32 v6, 1, v0
    v_lshl_add_u32 v{URL}, v6, 4, v5
    v_lshrrev_b32 v5, 3, v1
    v_mul_u32_u24 v5, 80, v5
    v_mul_u32_u24 v6, {96*80}, v6
    v_add_u32 v5, v5, v6
    v_bfe_u32 v6, v0, 1, 2
    v_lshl_add_u32 v5, v6, 4, v5
    v_add_u32 v{URW}, {L_UR + 32*80}, v5
    v_lshrrev_b32 v5, 1, v1
    v_lshlrev_b32 v5, 7, v5
    v_and_b32 v6, 1, v1
    v_lshl_add_u32 v{FAO}, v6, 3, v5
    v_bfe_u32 v5, v1, 3, 2
    v_lshlrev_b32 v5, 13, v5
    v_lshl_add_u32 v5, v7, 9, v5
    v_and_b32 v6, 7, v1
    v_lshl_add_u32 v{QS}, v6, 4, v5
    v_lshlrev_b32 v5, 9, v7
    v_and_b32 v6, 15, v1
    v_lshl_add_u32 v{KVS}, v6, 4, v5
    s_mov_b32 s{S_VMASK}, 0xffff
    s_mov_b32 s{S_VMASK+1}, 0xffff
    s_mov_b32 s{S_LTO}, {L_TO}""")


def pre_c(a):
    a.c("---- conv (waves 0..3: ch = w>>1, kk = w&1), its epilogue (wave: I = w>>2, q = w&3), attention constants ----")
    a(f"""v_mov_b64 v[2:3], 0
    v_mov_b64 v[4:5], 0
    v_and_b32 v8, 31, v1
    v_lshrrev_b32 v7, 5, v1
    v_mfma_f32_32x32x16_bf16 {vr(A_C,16)}, v[2:5], v[2:5], 0
    v_mfma_f32_32x32x16_bf16 {vr(A_ACC,16)}, v[2:5], v[2:5], 0
    v_mul_u32_u24 v6, 80, v8
    v_lshl_add_u32 v5, v7, 4, v6
    s_lshr_b32 s{S_T0}, s{S_WAVE}, 1
    s_and_b32 s{S_T1}, s{S_WAVE}, 1
    s_lshl_b32 s{S_T1}, s{S_T1}, 5
    s_mul_i32 s{S_T2}, s{S_T0}, {96*80}
    s_add_u32 s{S_T2}, s{S_T2}, s{S_T1}
    s_add_u32 s{S_T2}, s{S_T2}, {L_UR + 80}
    v_add_u32 v{CVB}, s{S_T2}, v5
    v_and_b32 v4, 3, v1
    v_xor_b32 v5, 3, v4
    v_mul_u32_u24 v5, {KC_COPY}, v5
    v_lshl_add_u32 v5, v7, 4, v5
    v_lshrrev_b32 v3, 2, v8
    v_lshlrev_b32 v3, 3, v3
    v_sub_u32 v5, v5, v3
    s_mul_i32 s{S_T2}, s{S_T0}, {KC_CH}
    s_add_u32 s{S_T2}, s{S_T2}, s{S_T1}
    s_add_u32 s{S_T2}, s{S_T2}, {L_KC + 2*2044 - 64*31 - 2048}
    v_add_u32 v{CVA}, s{S_T2}, v5
    s_lshl_b32 s{S_T0}, s{S_WAVE}, 13
    s_add_u32 s{S_T0}, s{S_T0}, {L_PB}
    v_add_u32 v{PBW}, s{S_T0}, v{V_L16}
    v_bfe_u32 v5, v0, 2, 5
    v_lshlrev_b32 v6, 2, v4
    v_xor_b32 v6, v6, v5
    v_lshlrev_b32 v6, 4, v6
    v_lshl_add_u32 v6, v4, 10, v6
    s_lshl_b32 s{S_T0}, s{S_KAP}, 14
    s_bfe_u32 s{S_T1}, s{S_WAVE}, 0x10001
    s_lshl_b32 s{S_T2}, s{S_T1}, 12
    s_add_u32 s{S_T0}, s{S_T0}, s{S_T2}
    s_add_u32 s{S_T0}, s{S_T0}, {L_PB}
    v_add_u32 v{PBR}, s{S_T0}, v6
    v_mul_u32_u24 v5, 80, v5
    v_lshl_add_u32 v5, v4, 4, v5
    s_mul_i32 s{S_T0}, s{S_KAP}, {96*80}
    s_mul_i32 s{S_T1}, s{S_T1}, {32*80}
    s_add_u32 s{S_T0}, s{S_T0}, s{S_T1}
    s_add_u32 s{S_T0}, s{S_T0}, {L_UR + 32*80}
    v_add_u32 v{EPU}, s{S_T0}, v5
    s_lshr_b32 s{S_T2}, s{S_M1}, 1
    s_add_u32 s{S_T2}, s{S_T2}, {L_QS}
    v_add_u32 v{QRD}, s{S_T2}, v{V_L16}
    v_lshrrev_b32 v5, 3, v0
    v_and_b32 v6, 7, v0
    v_lshlrev_b32 v6, 4, v6
    v_lshl_add_u32 v{YV}, v5, 12, v6
    v_lshrrev_b32 v5, 3, v1
    v_lshl_add_u32 v{YST}, v5, 11, v6
    v_and_b32 v5, 48, v1
    v_bfe_u32 v6, v1, 1, 1
    v_lshl_add_u32 v5, v6, 3, v5
    v_bfe_u32 v6, v1, 2, 2
    v_add_u32 v5, v5, v6
    v_lshlrev_b32 v5, 7, v5
    v_and_b32 v6, 1, v1
    v_lshl_add_u32 v5, v6, 3, v5
    s_lshl_b32 s{S_T0}, s{S_WAVE}, 4
    s_add_u32 s{S_T0}, s{S_T0}, {L_YT}
    v_add_u32 v{YTR}, s{S_T0}, v5
    v_and_b32 v5, 7, v1
    v_lshrrev_b32 v6, 3, v1
    v_lshlrev_b32 v6, 4, v6
    v_lshl_add_u32 v5, v5, 7, v6
    s_mul_i32 s{S_T0}, s{S_WAVE}, 2304
    s_add_u32 s{S_T0}, s{S_T0}, {L_XB}
    v_add_u32 v{YPW}, s{S_T0}, v5
    v_lshlrev_b32 v{FCO}, 7, v8
    v_mov_b32 v{A_IDX}, 0xdddddddd
    v_and_b32 v2, 1, v1
    v_mul_u32_u24 v2, 0xaaaa, v2
    v_add_u32 v{A_IDX2}, 0x4444, v2
    v_and_b32 v2, 27, v1
    v_cmp_eq_u32 vcc, 16, v2
    v_mov_b32 v3, 0x3f803f80
    s_lshl_b32 s{S_T0}, s{S_KAP}, 11
    s_add_u32 s{S_T0}, s{S_T0}, {KV_X}
    v_cndmask_b32 v2, 0, v3, vcc
    v_add_u32 v{A_ADDR}, s{S_T0}, v{V_L16}
    v_mov_b32 v3, v2""")
    for i in range(0, 16, 2):
        a(f"v_mov_b64 {vr(A_V0+i,2)}, v[2:3]")
    for i in range(0, 10, 2):
        a(f"v_mov_b64 {vr(A_O+i,2)}, 0")


def g_comp(a, p):
    steps = [(s, ks) for s in (2*p, 2*p+1) for ks in range(4)]
    NSET, AHEAD = 6, 5
    a.reset()
    tok = {}
    def reads(i):
        if i >= len(steps): return
        s, ks = steps[i]
        F = G_FR + (i % NSET) * 8
        so = (s & 3) * 16384
        a.lds(f"ds_read_b64_tr_b16 {vr(F,2)}, v{GA} offset:{so + ks*2048}")
        a.lds(f"ds_read_b64_tr_b16 {vr(F+2,2)}, v{GA} offset:{so + ks*2048 + 512}")
        tok[i] = a.lds(f"ds_read_b128 {vr(F+4,4)}, v{GB0+ks} offset:{so}")
    for i in range(AHEAD): reads(i)
    for i in range(len(steps)):
        F = G_FR + (i % NSET) * 8
        a.wait_l(tok[i])
        C = "0" if steps[i] == (0, 0) else vr(G_ACC, 16)
        a(f"v_mfma_f32_32x32x16_bf16 {vr(G_ACC,16)}, {vr(F,4)}, {vr(F+4,4)}, {C}")
        reads(i + AHEAD)


def g_kv(a, p):
    sk = a.label("nkv")
    a(f"""s_cmp_lg_u32 s{S_WAVE}, {KV_WAVE}
    s_cbranch_scc1 {sk}""")
    steps = [(s, ks) for s in (2*p, 2*p+1) for ks in range(2)]
    a.reset()
    tok = {}
    for i, (s, ks) in enumerate(steps):
        F = G_FR + i * 8
        a.lds(f"ds_read_b64_tr_b16 {vr(F,2)}, v{GA} offset:{s*2048 + ks*1024}")
        a.lds(f"ds_read_b64_tr_b16 {vr(F+2,2)}, v{GA} offset:{s*2048 + ks*1024 + 128}")
        tok[i] = a.lds(f"ds_read_b128 {vr(F+4,4)}, v{GB0+ks} offset:{(s & 3)*16384}")
    for i in range(len(steps)):
        F = G_FR + i * 8
        a.wait_l(tok[i])
        C = (lambda r: "0") if steps[i] == (0, 0) else (lambda r: vr(r, 4))
        a(f"""v_mfma_f32_16x16x32_bf16 {vr(G_ACCK,4)}, {vr(F,4)}, {vr(F+4,4)}, {C(G_ACCK)}
        v_mfma_f32_16x16x32_bf16 {vr(G_ACCV,4)}, {vr(F+4,4)}, {vr(F,4)}, {C(G_ACCV)}""")
    a(f"{sk}:")


def phase_u(a):
    a.c("---- u transpose ----")
    a(f"""v_xor_b32 v6, 64, v{UA}
    ds_read_b64_tr_b16 v[2:3], v{UA}
    ds_read_b64_tr_b16 v[4:5], v{UA} offset:512
    ds_read_b64_tr_b16 {vr(KGP+2,2)}, v6
    ds_read_b64_tr_b16 {vr(KGP+4,2)}, v6 offset:512
    s_lshr_b32 s{S_T0}, s{S_TASK}, 5
    s_lshl_b32 s{S_T0}, s{S_T0}, 18
    s_and_b32 s{S_T1}, s{S_TASK}, 31
    s_lshl_b32 s{S_T1}, s{S_T1}, 9
    s_add_u32 s{S_T0}, s{S_T0}, s{S_T1}
    s_lshr_b32 s{S_T1}, s{S_M1}, 4
    s_add_u32 s{S_T0}, s{S_T0}, s{S_T1}
    s_add_u32 s{S_T0}, s{S_T0}, {WS_UT}
    s_add_u32 s{S_T1}, s{S_T0}, {8 << 14}
    s_waitcnt lgkmcnt(2)
    buffer_store_dwordx4 v[2:5], v{US}, {sr(R_WS,4)}, s{S_T0} offen {SC}
    s_waitcnt lgkmcnt(0)
    buffer_store_dwordx4 {vr(KGP+2,4)}, v{US}, {sr(R_WS,4)}, s{S_T1} offen {SC}""")


def phase_wt(a):
    a.c("---- wo fragments (waves 4,5) ----")
    sk = a.label("nowt")
    a(f"""s_sub_u32 s{S_T2}, s{S_WAVE}, 5
    s_cmp_ge_u32 s{S_T2}, 2
    s_cbranch_scc1 {sk}
    v_lshrrev_b32 v2, 4, v1
    v_and_b32 v5, 3, v1
    v_bfe_u32 v3, v1, 2, 1
    v_bfe_u32 v4, v1, 3, 1
    v_lshl_add_u32 v3, v4, 2, v3
    v_lshlrev_b32 v3, 7, v3
    v_lshl_add_u32 v3, v5, 3, v3
    v_lshl_add_u32 v3, v2, 5, v3
    s_lshl_b32 s{S_T0}, s{S_T2}, 5
    v_xor_b32 v3, s{S_T0}, v3
    s_lshl_b32 s{S_T0}, s{S_T2}, 10
    s_add_u32 s{S_T0}, s{S_T0}, {L_WOT}
    v_add_u32 v3, s{S_T0}, v3
    v_xor_b32 v4, 64, v3
    ds_read_b64_tr_b16 v[6:7], v3
    ds_read_b64_tr_b16 v[8:9], v4 offset:256
    v_lshrrev_b32 v3, 2, v1
    v_lshlrev_b32 v3, 4, v3
    v_lshl_add_u32 v3, v5, 8, v3
    v_add_u32 v3, s{S_T0}, v3
    v_add_u32 v4, s{S_T0}, v{V_L16}
    v_and_b32 v5, 15, v1
    v_lshlrev_b32 v5, 4, v5
    v_lshl_add_u32 v2, v2, 11, v5
    s_waitcnt lgkmcnt(0)
    ds_write_b128 v3, v[6:9]
    ds_read_b128 v[6:9], v4
    s_lshr_b32 s{S_T0}, s{S_RB}, 2
    s_lshl_b32 s{S_T0}, s{S_T0}, 16
    s_lshl_b32 s{S_T1}, s{S_CB}, 13
    s_add_u32 s{S_T0}, s{S_T0}, s{S_T1}
    s_and_b32 s{S_T1}, s{S_RB}, 3
    s_lshl_b32 s{S_T1}, s{S_T1}, 9
    s_add_u32 s{S_T0}, s{S_T0}, s{S_T1}
    s_lshl_b32 s{S_T1}, s{S_T2}, 8
    s_add_u32 s{S_T0}, s{S_T0}, s{S_T1}
    s_add_u32 s{S_T0}, s{S_T0}, {WS_WT}
    s_waitcnt lgkmcnt(0)
    buffer_store_dwordx4 v[6:9], v2, {sr(R_WS,4)}, s{S_T0} offen {SC}
    {sk}:""")


def kg_valu(a):
    AL, BE, DT = KG, KG + 1, KG + 2
    T = KG + 4
    Z, W = KG + 8, KG + 10
    P = KG + 12
    Z2 = KG + 30
    TT = KG + 32
    O = KG + 40
    R = XY_ROW
    a.c("---- K-gen VALU ----")
    a(f"""v_lshlrev_b32 v{KGP}, 16, v{KGP}
    v_lshlrev_b32 v{KGP+1}, 16, v{KGP+1}
    s_cmp_lt_u32 s{S_WAVE}, 4
    s_cselect_b32 s{S_T0}, {f2u(8.0):#x}, {f2u(1.0):#x}
    s_mov_b32 s{S_T1}, {f2u(256.0):#x}
    s_cselect_b32 s{S_T1}, {f2u(32.0):#x}, s{S_T1}
    s_cselect_b32 s{S_T2}, {f2u(-1/(2*math.pi)):#x}, {f2u(1/(2*math.pi)):#x}
    v_mul_f32 v{AL}, v{DT}, v{KGP}
    v_mul_f32 v{BE}, v{DT}, v{KGP+1}
    v_mul_f32 v{AL}, s{S_K0}, v{AL}
    v_mul_f32 v{BE}, s{S_T2}, v{BE}
    v_mul_f32 v{T}, s{S_T0}, v{AL}
    v_mul_f32 v{T+1}, s{S_T0}, v{BE}
    v_mul_f32 v{T+2}, s{S_T1}, v{AL}
    v_mul_f32 v{T+3}, s{S_T1}, v{BE}
    v_exp_f32 v{T}, v{T}
    v_fract_f32 v{T+1}, v{T+1}
    v_exp_f32 v{T+2}, v{T+2}
    v_fract_f32 v{T+3}, v{T+3}
    v_cos_f32 v{Z}, v{T+1}
    v_sin_f32 v{Z+1}, v{T+1}
    v_cos_f32 v{W}, v{T+3}
    v_sin_f32 v{W+1}, v{T+3}
    v_pk_mul_f32 {vr(Z,2)}, {vr(Z,2)}, {vr(T,2)} op_sel:[0,0] op_sel_hi:[1,0]
    v_pk_mul_f32 {vr(W,2)}, {vr(W,2)}, {vr(T+2,2)} op_sel:[0,0] op_sel_hi:[1,0]""")
    st = dict(o=0)
    def muls(lst, puts=()):
        puts = list(puts)
        def fill():
            if puts:
                src, offs = puts.pop(0)
                o = O + (st["o"] & 7); st["o"] += 1
                a(f"v_cvt_pk_bf16_f32 v{o}, v{src}, v{src+1}")
                for x in offs: a(f"ds_write_b32 v{XYW}, v{o} offset:{x}")
        while puts and any(d == s for d, _, _ in lst for s, _ in puts):
            fill()
        for k, (D, Pp, Ww) in enumerate(lst):
            a(f"v_pk_mul_f32 {vr(TT+2*k,2)}, {vr(Pp,2)}, {vr(Ww,2)} op_sel:[0,0] op_sel_hi:[0,1]")
        fill()
        for k, (D, Pp, Ww) in enumerate(lst):
            a(f"v_pk_fma_f32 {vr(D,2)}, {vr(Pp,2)}, {vr(Ww,2)}, {vr(TT+2*k,2)} op_sel:[1,1,0] op_sel_hi:[1,0,1] neg_lo:[1,0,0]")
        while puts: fill()
    ly = a.label("kgy"); le = a.label("kge")
    a(f"s_cbranch_scc1 {ly}")
    for i in range(2, 6):
        a(f"v_lshlrev_b32 v{KGP+i}, 16, v{KGP+i}")
    a(f"v_pk_mul_f32 {vr(KGP+2,2)}, {vr(KGP+2,2)}, {vr(DT,2)} op_sel:[0,0] op_sel_hi:[1,0]")
    p = lambda e: P + 2*e
    muls([(p(0), KGP+4, KGP+2), (Z2, Z, Z)])
    muls([(p(1), p(0), Z), (p(2), p(0), Z2), (T, Z2, Z2)], [(p(0), [0])])
    muls([(p(3), p(1), Z2), (p(4), p(0), T), (p(5), p(1), T), (p(6), p(2), T)], [(p(1), [R]), (p(2), [2*R])])
    muls([(p(7), p(3), T), (p(8), p(4), T), (p(0), p(0), W), (p(2), p(2), W)], [(p(3), [3*R]), (p(4), [4*R]), (p(5), [5*R]), (p(6), [6*R])])
    muls([(p(4), p(4), W), (p(6), p(6), W), (p(8), p(8), W), (p(1), p(0), W)], [(p(7), [7*R]), (p(0), [8*R]), (p(2), [9*R])])
    muls([(p(3), p(4), W), (p(5), p(8), W), (p(0), p(1), W)], [(p(4), [10*R, 12*R]), (p(6), [13*R]), (p(8), [14*R]), (p(1), [16*R])])
    muls([(p(4), p(3), W), (p(8), p(5), W), (p(1), p(0), W)], [(p(3), [17*R]), (p(5), [18*R]), (p(0), [20*R])])
    muls([(p(5), p(8), W), (p(0), p(1), W)], [(p(4), [21*R]), (p(8), [22*R]), (p(1), [24*R])])
    muls([(p(8), p(5), W), (p(1), p(0), W)], [(p(5), [25*R]), (p(0), [26*R])])
    muls([(p(5), p(8), W), (p(0), p(1), W)], [(p(8), [27*R]), (p(1), [28*R])])
    muls([(p(8), p(5), W)], [(p(5), [29*R]), (p(0), [30*R])])
    muls([], [(p(8), [31*R])])
    a(f"s_branch {le}\n{ly}:")
    a(f"""v_mov_b32 v{O}, 0x3f80
    ds_write_b32 v{XYW}, v{O}""")
    st["o"] = 1
    muls([(p(2), Z, Z), (p(5), Z, W), (p(0), W, W)], [(Z, [R]), (W, [4*R])])
    muls([(p(3), p(2), Z), (p(6), p(2), W), (p(1), p(5), W), (p(4), p(0), W)], [(p(2), [2*R]), (p(5), [5*R]), (p(0), [8*R])])
    muls([(p(7), p(3), W), (p(2), p(6), W), (p(5), p(1), W), (p(0), p(4), W)], [(p(3), [3*R]), (p(6), [6*R]), (p(1), [9*R]), (p(4), [12*R])])
    cur = [(p(7), 7), (p(2), 10), (p(5), 13), (p(0), 16)]
    alt = {p(7): p(3), p(3): p(7), p(2): p(6), p(6): p(2), p(5): p(1), p(1): p(5), p(0): p(4), p(4): p(0)}
    while cur:
        nxt = [(alt[r], lo + 4) for r, lo in cur if lo + 4 < 32]
        muls([(alt[r], r, W) for r, lo in cur if lo + 4 < 32], [(r, [lo*R]) for r, lo in cur])
        cur = nxt
    a(f"{le}:")


def kg_mfma(a):
    F = 144
    a.c("---- K-gen MFMA ----")
    for ks in range(7):
        a(f"""ds_read_b128 {vr(F+8*ks,4)}, v{KGX} offset:{64*ks}
        ds_read_b128 {vr(F+8*ks+4,4)}, v{KGY} offset:{64*ks}""")
    for ks in range(8):
        if ks == 0:
            a("s_waitcnt lgkmcnt(12)")
            a(f"v_mfma_f32_16x16x32_bf16 {vr(KG_D,4)}, {vr(F,4)}, {vr(F+4,4)}, 0")
            a(f"""ds_read_b128 {vr(F,4)}, v{KGX} offset:{64*7}
            ds_read_b128 {vr(F+4,4)}, v{KGY} offset:{64*7}""")
        else:
            FF = F + 8*(ks % 7)
            a(f"s_waitcnt lgkmcnt({14 - 2*ks})")
            a(f"v_mfma_f32_16x16x32_bf16 {vr(KG_D,4)}, {vr(FF,4)}, {vr(FF+4,4)}, {vr(KG_D,4)}")


def kg_copy0(a):
    a.c("---- K copy0 (staged) ----")
    B = KG
    l1 = a.label("rt1"); le = a.label("c0e")
    a(f"""v_cvt_pk_bf16_f32 v2, v{KG_D}, v{KG_D+1}
    v_cvt_pk_bf16_f32 v3, v{KG_D+2}, v{KG_D+3}
    v_perm_b32 v{B}, v3, v2, v{SL0}
    v_perm_b32 v{B+1}, v3, v2, v{SL1}
    s_bitcmp1_b32 s{S_WAVE}, 1
    s_cbranch_scc1 {l1}
    ds_write_b64 v{C0A}, {vr(B,2)} offset:{2*2044}
    s_branch {le}
    {l1}:
    v_perm_b32 v{B+2}, v3, v2, v{SL2}
    v_perm_b32 v{B+3}, v3, v2, v{SL3}
    ds_write_b128 v{C0A}, {vr(B,4)} offset:{2*2040}
    v_perm_b32 v{B+4}, v2, v3, v{SL0}
    v_perm_b32 v{B+5}, v2, v3, v{SL1}
    v_perm_b32 v{B+6}, v2, v3, v{SL2}
    v_perm_b32 v{B+7}, v2, v3, v{SL3}
    s_mov_b32 exec_lo, 0
    ds_write_b128 v{C0A}, {vr(B+4,4)} offset:{2*2040 - 512}
    s_mov_b32 exec_lo, -1
    {le}:""")


def kg_expand_read(a):
    B = EX
    a(f"""ds_read_b128 {vr(B,4)}, v{EXR}
    ds_read_b64 {vr(B+4,2)}, v{EXR} offset:16""")

def kg_expand_math(a):
    B = EX
    a(f"""v_and_b32 v2, 255, v0
    v_cmp_ne_u32 vcc, 255, v2
    s_nop 1
    v_cndmask_b32 v{B+4}, 0, v{B+4}, vcc
    v_cndmask_b32 v{B+5}, 0, v{B+5}, vcc""")
    for k in range(4):
        a(f"v_alignbit_b32 v{B+8+k}, v{B+1+k}, v{B+k}, 16")
    for k in range(4):
        a(f"v_mov_b32 v{B+12+k}, v{B+1+k}")
    for k in range(4):
        a(f"v_alignbit_b32 v{B+16+k}, v{B+2+k}, v{B+1+k}, 16")

def kg_expand_write(a):
    B = EX
    a.c("---- four shifted copies + zero fill ----")
    a(f"""v_mov_b64 v[4:5], 0
    v_mov_b64 v[6:7], 0
    ds_write_b128 v{EXA}, {vr(B,4)}
    ds_write_b128 v{EXA}, {vr(B+8,4)} offset:{KC_COPY}
    ds_write_b128 v{EXA}, {vr(B+12,4)} offset:{2*KC_COPY}
    ds_write_b128 v{EXA}, {vr(B+16,4)} offset:{3*KC_COPY}
    ds_write_b128 v{ZA}, v[4:7]""")


def q_epilogue(a):
    a.c("---- Q store (compute waves) ----")
    E = G_FR
    a(f"""s_lshr_b32 s{S_T1}, s{S_WAVE}, 1
    s_lshl_b32 s{S_T1}, s{S_T1}, 15
    s_add_u32 s{S_T0}, s{S_XO}, s{S_T1}
    s_lshl_b32 s{S_T1}, s{S_CB}, 10
    s_add_u32 s{S_T0}, s{S_T0}, s{S_T1}
    s_and_b32 s{S_T1}, s{S_WAVE}, 1
    s_lshl_b32 s{S_T1}, s{S_T1}, 8
    s_add_u32 s{S_T0}, s{S_T0}, s{S_T1}
    s_nop 3""")
    for i in range(4):
        a(f"v_cvt_pk_bf16_f32 v{E+i}, v{G_ACC+2*i}, v{G_ACC+2*i+1}")
    a(f"buffer_store_dwordx4 {vr(E,4)}, v{QS}, {sr(R_WS,4)}, s{S_T0} offen {SC}")
    for i in range(4, 8):
        a(f"v_cvt_pk_bf16_f32 v{E+i}, v{G_ACC+2*i}, v{G_ACC+2*i+1}")
    a(f"buffer_store_dwordx4 {vr(E+4,4)}, v{QS}, {sr(R_WS,4)}, s{S_T0} offen offset:128 {SC}")
    a(f"""v_dot2_f32_bf16 v2, v{E}, v{E}, 0
    v_dot2_f32_bf16 v3, v{E+4}, v{E+4}, 0""")
    for i in range(1, 4):
        a(f"""v_dot2_f32_bf16 v2, v{E+i}, v{E+i}, v2
        v_dot2_f32_bf16 v3, v{E+4+i}, v{E+4+i}, v3""")
    a(f"""s_nop 2
    v_max_u32 v{V_NQ}, v2, v3""")


def kv_epilogue(a):
    E = G_FR
    le = a.label("kvend"); lv = a.label("isv"); ls = a.label("kvst")
    scale = 0.25 * math.log2(math.e)
    K = E + 4
    a(f"""s_cmp_lg_u32 s{S_WAVE}, {KV_WAVE}
    s_cbranch_scc1 {le}
    v_mov_b32 v{V_NK+1}, {f2u(1e24):#x}
    s_lshr_b32 s{S_T0}, s{S_TASK}, 2
    s_lshl_b32 s{S_T0}, s{S_T0}, 11
    s_bfe_u32 s{S_T1}, s{S_CB}, 0x10001
    s_lshl_b32 s{S_T1}, s{S_T1}, 8
    s_add_u32 s{S_T0}, s{S_T0}, s{S_T1}
    s_add_u32 s{S_T0}, s{S_T0}, {WS_KV + 1024}
    s_bitcmp1_b32 s{S_CB}, 0
    s_cbranch_scc1 {ls}
    s_sub_u32 s{S_T0}, s{S_T0}, 1024""")
    for i in range(4):
        a(f"v_mul_f32 v{G_ACCV+i}, {f2u(scale):#x}, v{G_ACCK+i}")
    a(f"""{ls}:
    v_cvt_pk_bf16_f32 v{K}, v{G_ACCV}, v{G_ACCV+1}
    v_cvt_pk_bf16_f32 v{K+1}, v{G_ACCV+2}, v{G_ACCV+3}
    v_cvt_pk_bf16_f32 v{K+2}, v{G_ACCV}, v{G_ACCV+1}
    v_cvt_pk_bf16_f32 v{K+3}, v{G_ACCV+2}, v{G_ACCV+3}
    v_mul_f32 v4, v{G_ACCV}, v{G_ACCV}
    v_fmac_f32 v4, v{G_ACCV+1}, v{G_ACCV+1}
    v_permlane16_swap_b32 v{K}, v{K+2}
    v_permlane16_swap_b32 v{K+1}, v{K+3}
    s_mov_b64 exec, {sr(S_VMASK,2)}
    buffer_store_dwordx4 {vr(K,4)}, v{KVS}, {sr(R_WS,4)}, s{S_T0} offen {SC}
    s_mov_b64 exec, -1
    v_fmac_f32 v4, v{G_ACCV+2}, v{G_ACCV+2}
    v_fmac_f32 v4, v{G_ACCV+3}, v{G_ACCV+3}
    v_mov_b32 v5, v4
    s_nop 1
    v_permlane32_swap_b32 v4, v5
    s_nop 1
    v_add_f32 v4, v4, v5
    v_mov_b32 v5, v4
    s_nop 1
    v_permlane16_swap_b32 v4, v5
    s_nop 1
    v_add_f32 v{V_NK}, v4, v5
    s_bitcmp1_b32 s{S_CB}, 0
    s_cbranch_scc0 {le}
    v_cmp_nle_f32 vcc, v{V_NK}, v{V_NK+1}
    v_mov_b32 v5, 0x7f800000
    s_nop 0
    v_cndmask_b32 v{V_NK}, 0, v5, vcc
    {le}:""")


def signal_a(a, younger):
    sk = a.label("nofl")
    a(f"""s_lshl_b32 s{S_T0}, s{S_FB}, 4
    s_add_u32 s{S_T0}, s{S_T0}, s{S_WAVE}
    s_sub_u32 s{S_T0}, s{S_T0}, 4
    s_cmp_ge_u32 s{S_T0}, 4
    s_cbranch_scc1 {sk}
    s_lshl_b32 s{S_T1}, s{S_LIN}, 5
    s_add_u32 s{S_T0}, s{S_T0}, s{S_T1}
    s_lshl_b32 s{S_T0}, s{S_T0}, 2
    s_add_u32 s{S_T0}, s{S_T0}, {WS_FA}
    v_mov_b32 v2, 0
    v_mov_b32 v3, s{S_TAG}
    s_waitcnt vmcnt({younger})
    s_mov_b64 exec, 1
    buffer_store_dword v3, v2, {sr(R_WS,4)}, s{S_T0} offen {SC}
    s_mov_b64 exec, -1
    {sk}:""")


def poll_a_issue(a):
    a(f"""s_lshr_b32 s{S_T0}, s{S_LIN}, 5
    s_lshl_b32 s{S_T0}, s{S_T0}, 12
    s_add_u32 s{S_W0}, s{S_T0}, {WS_FA}
    buffer_load_dwordx2 {vr(V_FA,2)}, v{FAO}, {sr(R_WS,4)}, s{S_W0} offen {SC}""")


def poll_a_test():
    return f"""v_xor_b32 v{V_FA}, s{S_TAG}, v{V_FA}
    v_xor_b32 v{V_FA+1}, s{S_TAG}, v{V_FA+1}
    v_or_b32 v{V_FA}, v{V_FA}, v{V_FA+1}
    v_cmp_ne_u32 vcc, 0, v{V_FA}"""


def poll_a_try(a):
    sk = a.label("apend")
    a(f"""{poll_a_test()}
    s_mov_b32 s{S_W1}, 1
    s_cbranch_vccnz {sk}
    s_mov_b32 s{S_W1}, 0""")
    load_u(a)
    a(f"{sk}:")


def poll_a_finish(a):
    ok = a.label("aok"); lp = a.label("aspin")
    a(f"""s_mov_b32 s{S_CNT}, 0
    s_cmp_lg_u32 s{S_FB}, 0
    s_cbranch_scc1 {ok}
    {lp}:
    buffer_load_dwordx2 {vr(V_FA,2)}, v{FAO}, {sr(R_WS,4)}, s{S_W0} offen {SC}
    s_add_u32 s{S_CNT}, s{S_CNT}, 1
    s_waitcnt vmcnt(0)
    {poll_a_test()}
    s_cbranch_vccz {ok}
    s_mov_b64 exec, vcc
    s_sleep 16
    s_cmp_lt_u32 s{S_CNT}, {SPIN_MAX}
    s_cbranch_scc1 {lp}
    s_mov_b32 s{S_TOF}, 1
    {ok}:
    s_mov_b64 exec, -1""")
    load_u(a)
    a("s_waitcnt vmcnt(0)")


def load_u(a):
    a(f"""s_lshr_b32 s{S_T0}, s{S_LIN}, 1
    s_lshl_b32 s{S_T0}, s{S_T0}, 14
    s_and_b32 s{S_T1}, s{S_LIN}, 1
    s_lshl_b32 s{S_T1}, s{S_T1}, 5
    s_add_u32 s{S_T0}, s{S_T0}, s{S_T1}
    s_add_u32 s{S_T0}, s{S_T0}, {WS_UT}
    s_nop 0""")
    for i in range(8):
        a(f"buffer_load_dwordx4 {vr(UR_LD+4*i,4)}, v{URL}, {sr(R_WS,4)}, s{S_T0} offen offset:{2048*(i&1)} {SC}")
        if i & 1: a(f"s_add_u32 s{S_T0}, s{S_T0}, 4096")


def to_record(a):
    sk = a.label("noto")
    a(f"""s_cmp_eq_u32 s{S_TOF}, 0
    s_cbranch_scc1 {sk}
    v_mov_b32 v2, {L_TO}
    v_mov_b32 v3, s{S_TOF}
    ds_or_b32 v2, v3
    {sk}:""")


def ack_add():
    return f"""v_mov_b32 v2, {L_TO}
    v_mov_b32 v3, 1
    v_mov_b32 v4, s{S_TOF}
    s_waitcnt vmcnt(0)
    s_mov_b64 exec, 1
    ds_or_b32 v2, v4
    ds_add_u32 v2, v3 offset:4
    s_mov_b64 exec, -1"""


def wave_pkmax(a, r, t):
    for ror in (8, 4, 2, 1):
        a(f"""s_nop 1
        v_mov_b32_dpp v{t}, v{r} row_ror:{ror} row_mask:0xf bank_mask:0xf
        v_pk_max_u16 v{r}, v{r}, v{t}""")
    for sw in (16, 32):
        a(f"""v_mov_b32 v{t}, v{r}
        s_nop 1
        v_permlane{sw}_swap_b32 v{t}, v{r}
        s_nop 1
        v_pk_max_u16 v{r}, v{r}, v{t}""")


def cv_run(a):
    def rd(st, j):
        F = CV_FR + 16*st
        return [f"ds_read_b64 {vr(F,2)}, v{CVA} offset:{64*j + 2048}",
                f"ds_read_b64 {vr(F+2,2)}, v{CVA} offset:{64*j + 2048 + 8}",
                f"ds_read_b128 {vr(F+8,4)}, v{CVB} offset:{80*j}",
                f"ds_read_b128 {vr(F+12,4)}, v{CVB} offset:{80*j + 2560}",
                f"ds_read_b64 {vr(F+4,2)}, v{CVA} offset:{64*j}",
                f"ds_read_b64 {vr(F+6,2)}, v{CVA} offset:{64*j + 8}"]
    a.c("---- conv ----")
    a.reset()
    tok = {}
    def issue(j, part):
        if j >= 32: return
        R = rd(j % 3, j)
        for x in R[2*part:2*part+2]:
            tok[(j, R.index(x))] = a.lds(x)
    for j in range(2):
        for part in range(3): issue(j, part)
    a(".p2align 3")
    for j in range(32):
        F = CV_FR + 16*(j % 3)
        c0 = "0" if j == 0 else vr(CV_ACC, 16)
        c1 = "0" if j == 0 else vr(CV_ACC+16, 16)
        a.wait_l(tok[(j, 5)])
        a(f"v_mfma_f32_32x32x16_bf16 {vr(CV_ACC,16)}, {vr(F,4)}, {vr(F+8,4)}, {c0}")
        issue(j + 2, 0)
        a(f"v_mfma_f32_32x32x16_bf16 {vr(CV_ACC+16,16)}, {vr(F,4)}, {vr(F+12,4)}, {c1}")
        issue(j + 2, 1)
        a(f"v_mfma_f32_32x32x16_bf16 {vr(CV_ACC+16,16)}, {vr(F+4,4)}, {vr(F+8,4)}, {vr(CV_ACC+16,16)}")
        issue(j + 2, 2)
        if j == OPT.get("ackj", 4):
            a(ack_add()); a.nl += 2
    a(f"""v_xor_b32 v2, 64, v{PBW}
    v_xor_b32 v3, 128, v{PBW}
    v_xor_b32 v4, 192, v{PBW}
    s_nop 6""")
    for q in range(8):
        if q == 4: a("s_nop 0")
        a(f"ds_write_b128 v{[PBW, 2, 3, 4][q & 3]}, {vr(CV_ACC+4*q,4)} offset:{1024*q}")


def loader_b(a):
    ok = a.label("bok"); lp = a.label("bspin"); la = a.label("ackl"); go = a.label("bgo"); lw = a.label("bwait"); st = a.label("bstage"); gv = a.label("bgv")
    EARLY = OPT["early"]
    P = 128
    a(f"""v_mov_b32 v4, {L_TO}
    s_cmp_eq_u32 s{S_WAVE}, 7
    s_cbranch_scc1 {la}
    {lw}:
    s_sleep 1
    ds_read_b32 v5, v4 offset:8
    s_waitcnt lgkmcnt(0)
    v_cmp_eq_u32 vcc, 0, v5
    s_cbranch_vccnz {lw}
    s_branch {st}
    {la}:
    v_lshlrev_b32 v2, 2, v1
    ds_read2st64_b32 {vr(P,2)}, v2 offset0:{L_NRM//256} offset1:{L_NRM//256+1}
    ds_read2st64_b32 {vr(P+2,2)}, v2 offset0:{L_NRM//256+2} offset1:{L_NRM//256+3}
    ds_read2st64_b32 {vr(P+4,2)}, v2 offset0:{L_NRM//256+4} offset1:{L_NRM//256+5}
    ds_read2st64_b32 {vr(P+6,2)}, v2 offset0:{L_NRM//256+6} offset1:{L_NRM//256+7}
    s_mov_b32 s{S_CNT}, 0
    s_or_b32 s{S_TOF}, s{S_FB}, 2
    s_cmp_lg_u32 s{S_FB}, 0
    s_waitcnt lgkmcnt(0)
    s_cbranch_scc1 {go}
    v_pk_max_u16 v{P}, v{P}, v{P+1}
    v_pk_max_u16 v{P+2}, v{P+2}, v{P+3}
    v_pk_max_u16 v{P+4}, v{P+4}, v{P+5}
    v_pk_max_u16 v{P+6}, v{P+6}, v{P+7}
    v_pk_max_u16 v{P}, v{P}, v{P+2}
    v_pk_max_u16 v{P+4}, v{P+4}, v{P+6}
    v_pk_max_u16 v3, v{P}, v{P+4}""")
    wave_pkmax(a, 3, 5)
    lc = a.label("ackc")
    a(f"""v_mov_b32 v2, s{S_TAG}
    s_lshl_b32 s{S_T0}, s2, 3
    s_add_u32 s{S_T0}, s{S_T0}, {WS_FB}
    {lc}:
    ds_read_b32 v5, v4 offset:4
    s_waitcnt lgkmcnt(0)
    v_cmp_ne_u32 vcc, 8, v5
    s_cbranch_vccnz {lc}
    v_mov_b32 v5, 0
    s_mov_b64 exec, 1
    buffer_store_dwordx2 v[2:3], v5, {sr(R_WS,4)}, s{S_T0} offen {SC}
    s_mov_b64 exec, -1""")
    a.stamp("sigB")
    a(f"""s_mov_b32 s{S_T0}, {WS_FB}
    s_sleep {OPT["delay"]}
    {lp}:
    buffer_load_dwordx4 {vr(P,4)}, v{V_L16}, {sr(R_WS,4)}, s{S_T0} offen {SC}
    buffer_load_dwordx4 {vr(P+4,4)}, v{V_L16}, {sr(R_WS,4)}, s{S_T0} offen offset:1024 {SC}
    s_add_u32 s{S_CNT}, s{S_CNT}, 1
    s_waitcnt vmcnt(0)
    v_xor_b32 v2, s{S_TAG}, v{P}
    v_xor_b32 v5, s{S_TAG}, v{P+2}
    v_xor_b32 v6, s{S_TAG}, v{P+4}
    v_xor_b32 v7, s{S_TAG}, v{P+6}
    v_or3_b32 v2, v2, v5, v6
    v_or_b32 v2, v2, v7
    v_cmp_ne_u32 vcc, 0, v2
    s_cbranch_vccz {ok}
    s_mov_b64 exec, vcc
    s_sleep {OPT["sleep"]}
    s_cmp_lt_u32 s{S_CNT}, {SPIN_MAX}
    s_cbranch_scc1 {lp}
    s_cmp_gt_u32 s{S_CNT}, {SPIN_MAX}
    s_cbranch_scc1 {gv}
    s_mov_b64 {sr(S_PC,2)}, exec
    s_mov_b64 exec, 1
    v_mov_b32 v2, s{S_TAG}
    v_mov_b32 v5, {WS_ABN}
    buffer_store_dword v2, v5, {sr(R_WS,4)}, 0 offen {SC}
    s_waitcnt vmcnt(0)
    s_mov_b64 exec, {sr(S_PC,2)}
    s_branch {lp}
    {gv}:
    s_or_b32 s{S_TOF}, s{S_TOF}, 13
    {ok}:
    s_mov_b64 exec, -1
    v_mov_b32 v6, {WS_ABN}
    buffer_load_dword v6, v6, {sr(R_WS,4)}, 0 offen {SC}
    {go}:
    v_mov_b32 v5, 1
    ds_write_b32 v4, v5 offset:8
    {st}:""")
    a.stamp("flagB")
    a.c("wave j = w-4: Q tile j; KV unit (kappa = j>>1, part = j&1) of every early step")
    a(f"""s_lshr_b32 s{S_T2}, s{S_M1}, 1
    s_lshl_b32 s{S_T0}, s{S_LIN}, 13
    s_add_u32 m0, s{S_T2}, {L_QS}
    s_add_u32 s{S_T0}, s{S_T0}, s{S_T2}
    buffer_load_dwordx4 v{V_L16}, {sr(R_WS,4)}, s{S_T0} offen {SC} lds
    s_bfe_u32 s{S_T0}, s{S_WAVE}, 0x10001
    s_lshl_b32 s{S_T0}, s{S_T0}, 16
    s_and_b32 s{S_T1}, s{S_WAVE}, 1
    s_lshl_b32 s{S_T1}, s{S_T1}, 10
    s_add_u32 s{S_T0}, s{S_T0}, s{S_T1}
    s_add_u32 s{S_T0}, s{S_T0}, {WS_KV}""")
    for e in range(EARLY):
        a(f"""s_add_u32 m0, s{S_T2}, {KV_X + e*4096}
        s_nop 0
        buffer_load_dwordx4 v{V_L16}, {sr(R_WS,4)}, s{S_T0} offen {SC} lds
        s_add_u32 s{S_T0}, s{S_T0}, 2048""")
    a.c("softmax guard: |q.k| <= sqrt(2 max half-row |q|^2) * max |k| (Cauchy-Schwarz).  While that bound is small, exp2 of the")
    a.c("raw scores can neither overflow nor lose the row maximum to underflow, so no shift is needed; otherwise use true row maxima.")
    sk = a.label("gsk"); sk2 = a.label("gsk2"); sk3 = a.label("gsk3")
    a(f"""s_cmp_lg_u32 s{S_WAVE}, 7
    s_cbranch_scc1 {sk2}
    s_cmp_lg_u32 s{S_FB}, 0
    s_cbranch_scc1 {sk}
    v_pk_max_u16 v3, v{P+1}, v{P+3}
    v_pk_max_u16 v5, v{P+5}, v{P+7}
    v_pk_max_u16 v3, v3, v5""")
    wave_pkmax(a, 3, 5)
    a(f"""v_and_b32 v5, 0xffff0000, v3
    v_lshlrev_b32 v3, 16, v3
    v_mul_f32 v3, v3, v5
    v_cmp_ge_f32 vcc, {f2u(-1.0 if OPT["force_slow"] else BOUND_T*BOUND_T/2/1.04):#x}, v3
    s_cbranch_vccz {sk3}
    s_and_b32 s{S_TOF}, s{S_TOF}, 13
    {sk3}:
    s_waitcnt vmcnt({EARLY + 1})
    v_cmp_eq_u32 vcc, s{S_TAG}, v6
    s_cbranch_vccz {sk}
    s_or_b32 s{S_TOF}, s{S_TOF}, 4
    {sk}:
    v_mov_b32 v3, s{S_TOF}
    s_mov_b64 exec, 1
    ds_or_b32 v4, v3
    s_mov_b64 exec, -1
    {sk2}:
    s_waitcnt vmcnt(0)""")


EPB = 128

def at_begin(a):
    a.c("---- attention start ----")
    B = EPB
    a(f"""v_mov_b32 v6, {L_TO}
    ds_read_b32 v6, v6
    ds_read_b128 {vr(A_Q0,4)}, v{QRD}
    ds_read_b128 {vr(A_K,4)}, v{A_ADDR}
    s_lshl_b32 s{S_T0}, s{S_LIN}, 13
    s_lshr_b32 s{S_T1}, s{S_M1}, 1
    s_add_u32 s{S_T0}, s{S_T0}, s{S_T1}
    s_add_u32 s{S_T0}, s{S_T0}, 4096
    buffer_load_dwordx4 {vr(A_Q1,4)}, v{V_L16}, {sr(R_WS,4)}, s{S_T0} offen {SC}
    s_mov_b64 exec, {sr(S_VMASK,2)}
    ds_read_b128 {vr(A_V0,4)}, v{A_ADDR} offset:1024
    ds_read_b128 {vr(A_V0+4,4)}, v{A_ADDR} offset:1280
    s_mov_b64 exec, -1
    ds_read_b128 {vr(B,4)}, v{PBR}
    ds_read_b128 {vr(B+4,4)}, v{PBR} offset:512
    ds_read_b128 {vr(B+8,4)}, v{PBR} offset:8192
    ds_read_b128 {vr(B+12,4)}, v{PBR} offset:8704
    ds_read_b128 {vr(B+16,4)}, v{EPU}
    s_lshl_b32 s{S_T0}, s{S_KAP}, 4
    s_sub_u32 s{S_T0}, 16, s{S_T0}
    s_lshl_b32 s{S_K0}, s{S_DS}, s{S_T0}
    s_and_b32 s{S_K0}, s{S_K0}, 0xffff0000
    s_mov_b32 s{S_K1}, s{S_K0}
    s_waitcnt lgkmcnt(7)
    v_readfirstlane_b32 s{S_ST}, v6
    s_and_b32 s{S_T0}, s{S_ST}, 3
    s_cbranch_scc1 L_slow
    L_slow_done:
    v_mfma_f32_32x32x16_bf16 {vr(A_S0,16)}, {vr(A_K,4)}, {vr(A_Q0,4)}, {vr(A_C,16)}
    ds_read_b128 {vr(A_K,4)}, v{A_ADDR} offset:4096""")


def cv_epilogue_parts(a):
    B = EPB
    def p0():
        for i in range(0, 8, 2):
            a(f"v_pk_add_f32 {vr(B+i,2)}, {vr(B+i,2)}, {vr(B+8+i,2)}")
    def p1():
        for i in range(4):
            a(f"""v_lshlrev_b32 v{B+8+2*i}, 16, v{B+16+i}
            v_and_b32 v{B+9+2*i}, 0xffff0000, v{B+16+i}""")
    def p2():
        for i in range(0, 8, 2):
            a(f"v_pk_fma_f32 {vr(B+i,2)}, {vr(B+8+i,2)}, {sr(S_K0,2)}, {vr(B+i,2)}")
        for i in range(4):
            a(f"v_cvt_pk_bf16_f32 v{B+16+i}, v{B+2*i}, v{B+2*i+1}")
    return [p0, p1, p2]


def y_scatter(a):
    B = EPB
    a(f"""L_scatter:
    v_lshlrev_b32 v2, 14, v1
    s_and_b32 s{S_T0}, s{S_WAVE}, 3
    s_lshl_b32 s{S_T0}, s{S_T0}, 20
    s_lshl_b32 s{S_T1}, s{S_LIN}, 2
    s_add_u32 s{S_T0}, s{S_T0}, s{S_T1}
    s_lshl_b32 s{S_T1}, s{S_KAP}, 1
    s_add_u32 s{S_T0}, s{S_T0}, s{S_T1}""")
    for i in range(4):
        a(f"""buffer_store_short v{B+16+i}, v2, {sr(R_OUT,4)}, s{S_T0} offen
        buffer_store_short_d16_hi v{B+16+i}, v2, {sr(R_OUT,4)}, s{S_T0} offen offset:2048
        s_add_u32 s{S_T0}, s{S_T0}, 4096""")
    a("s_waitcnt vmcnt(0)\ns_branch L_scatter_done")


def at_slow(a):
    lp = a.label("mxl")
    a(f"""L_slow:
    s_bitcmp1_b32 s{S_ST}, 0
    s_cbranch_scc1 L_fallback
    s_waitcnt lgkmcnt(0)
    s_mov_b32 s{S_T0}, {WS_KV}
    s_mov_b32 s{S_CNT}, 64
    v_mov_b32 v2, 0xff800000
    v_mov_b32 v{A_M1}, 0xff800000
    {lp}:
    buffer_load_dwordx4 v[4:7], v{V_L16}, {sr(R_WS,4)}, s{S_T0} offen {SC}
    s_add_u32 s{S_T0}, s{S_T0}, 2048
    s_waitcnt vmcnt(0)
    v_mfma_f32_32x32x16_bf16 {vr(A_S0,16)}, v[4:7], {vr(A_Q0,4)}, 0
    v_mfma_f32_32x32x16_bf16 {vr(A_S1,16)}, v[4:7], {vr(A_Q1,4)}, 0
    s_nop 15""")
    for i in range(0, 16, 2):
        a(f"v_max3_f32 v2, v2, v{A_S0+i}, v{A_S0+i+1}")
    for i in range(0, 16, 2):
        a(f"v_max3_f32 v{A_M1}, v{A_M1}, v{A_S1+i}, v{A_S1+i+1}")
    a(f"""s_sub_u32 s{S_CNT}, s{S_CNT}, 1
    s_cmp_lg_u32 s{S_CNT}, 0
    s_cbranch_scc1 {lp}
    v_mov_b32 v3, v2
    v_mov_b32 v4, v{A_M1}
    s_nop 1
    v_permlane32_swap_b32 v2, v3
    v_permlane32_swap_b32 v{A_M1}, v4
    s_nop 1
    v_max_f32 v2, v2, v3
    v_max_f32 v{A_M1}, v{A_M1}, v4
    v_sub_f32 v2, 0, v2
    v_sub_f32 v{A_M1}, 0, v{A_M1}
    v_mov_b32 v3, v2""")
    for i in range(0, 16, 2):
        a(f"v_mov_b64 {vr(A_C+i,2)}, v[2:3]")
    a("s_nop 1\ns_branch L_slow_done")


def attention(a):
    NS = 64
    EARLY = OPT["early"]
    ins = {s: {k: [] for k in "ABCZ"} for s in range(NS + 1)}
    T = {}
    grp = ["kv"]
    off = OPT.get("off", "").split("+")
    class TD(dict):
        def __missing__(self, k): return 0
    T = TD()
    def add(s, slot, fn):
        if grp[0] not in off: ins[s][slot].append(fn)

    a.c("late KV: wave v loads (step = 2j + (v>>2), kappa = (v>>1)&1, part = v&1)")
    a(f"""s_lshl_b32 s{S_T0}, s{S_KAP}, 11
    s_bfe_u32 s{S_T1}, s{S_WAVE}, 0x10001
    s_lshl_b32 s{S_T1}, s{S_T1}, 16
    s_add_u32 s{S_T0}, s{S_T0}, s{S_T1}
    s_and_b32 s{S_T1}, s{S_WAVE}, 1
    s_lshl_b32 s{S_T1}, s{S_T1}, 10
    s_add_u32 s{S_T0}, s{S_T0}, s{S_T1}
    s_add_u32 s{S_W1}, s{S_T0}, {WS_KV + EARLY*2048}
    s_lshl_b32 s{S_W0}, s{S_WAVE}, 13
    s_add_u32 s{S_W0}, s{S_W0}, {WS_WT}""")
    NL = (32 - EARLY) // 2
    def kvdma(j):
        def f():
            a(f"s_add_u32 m0, s{S_M0}, {(EARLY*4096 + j*8192) ^ KV_X}\ns_nop 0")
            T[("kv", j)] = a.vm(f"buffer_load_dwordx4 v{V_L16}, {sr(R_WS,4)}, s{S_W1} offen {SC} lds")
            a(f"s_add_u32 s{S_W1}, s{S_W1}, 4096")
        return f
    B1 = min(EARLY - 3, 5)
    kv_step = {}
    st = 0
    for j in range(NL):
        if EARLY + 2*j >= 16: st = max(st, B1)
        kv_step[j] = st; add(st, OPT.get("slotkv", "C"), kvdma(j)); st += 1
    def arrive(k):
        a(f"""v_mov_b32 v2, {L_CNT}
        v_mov_b32 v3, 1
        s_mov_b64 exec, 1""")
        a.lds(f"ds_add_u32 v2, v3 offset:{4*k}")
        a("s_mov_b64 exec, -1")
    def peek(k):
        a(f"v_mov_b32 v9, {L_CNT}")
        T[("cnt", k)] = a.lds(f"ds_read_b32 v9, v9 offset:{4*k}")
    def passed(k):
        sp = a.label("sbs"); ok = a.label("sbo")
        a.wait_l(T[("cnt", k)])
        a(f"""v_readfirstlane_b32 s{S_T3}, v9
        s_cmp_lg_u32 s{S_T3}, 8
        s_cbranch_scc1 {sp}
        {ok}:""")
        a.late.append(lambda: a(f"""{sp}:
        v_mov_b32 v9, {L_CNT}
        ds_read_b32 v9, v9 offset:{4*k}
        s_waitcnt lgkmcnt(0)
        v_readfirstlane_b32 s{S_T3}, v9
        s_cmp_lg_u32 s{S_T3}, 8
        s_cbranch_scc1 {sp}
        s_branch {ok}"""))
    assert EARLY == 8
    def bar1():
        a.wait_v(T[("kv", 2)]); a("s_barrier")
        a(f"""v_mov_b32 v2, {L_CNT}
        v_mov_b64 v[4:5], 0
        v_mov_b64 v[6:7], 0
        s_mov_b64 exec, 1""")
        a.lds("ds_write_b128 v2, v[4:7]")
        a("s_mov_b64 exec, -1")
    add(5, "A", bar1)
    def bar2():
        a.wait_v(T[("kv", 7)]); a("s_barrier")
        a.c("every wave's y store is acknowledged: publish")
        a(f"""s_cmp_lg_u32 s{S_WAVE}, 0
        s_cbranch_scc1 L_nofc
        s_lshl_b32 s{S_T0}, s{S_LIN}, 7
        s_add_u32 s{S_T0}, s{S_T0}, {WS_FC}
        v_mov_b32 v2, 0
        v_mov_b32 v3, s{S_TAG}
        s_mov_b64 exec, 1
        buffer_store_dword v3, v2, {sr(R_WS,4)}, s{S_T0} offen {SC}
        s_mov_b64 exec, -1
        L_nofc:""")
    add(11, "A", bar2)
    grp[0] = "ep"
    ep = cv_epilogue_parts(a)
    add(0, "B", lambda: (a.wait_l(10), ep[0]()))
    add(0, "C", ep[1]); add(1, "B", ep[2])
    def y_store():
        a(f"""s_lshl_b32 s{S_T0}, s{S_LIN}, 13
        s_add_u32 s{S_T0}, s{S_T0}, s{S_M0}
        s_add_u32 s{S_T0}, s{S_T0}, {WS_YT}""")
        a.vm(f"buffer_store_dwordx4 {vr(EPB+16,4)}, v{V_L16}, {sr(R_WS,4)}, s{S_T0} offen {SC}")
        a(f"""s_bitcmp1_b32 s{S_ST}, 2
        s_cbranch_scc1 L_scatter
        L_scatter_done:""")
    add(1, "Z", y_store)
    grp[0] = "y"
    YP = OPT.get("ypoll", 16)
    def c_issue():
        a(f"""s_lshr_b32 s{S_T0}, s{S_LIN}, 5
        s_lshl_b32 s{S_T0}, s{S_T0}, 12
        s_add_u32 s{S_Y0}, s{S_T0}, {WS_FC}
        s_cmp_lg_u32 s{S_WAVE}, 1
        s_cbranch_scc1 L_noci
        buffer_load_dword v8, v{FCO}, {sr(R_WS,4)}, s{S_Y0} offen {SC}
        L_noci:""")
        T["ci"] = a.nv + 1
    add(YP, "B", c_issue)
    def c_check():
        a.wait_v(max(T["ci"], T[("kv", NL - 1)]))
        a(f"""s_and_b32 s{S_T0}, s{S_ST}, 8
        s_add_u32 s{S_T0}, s{S_T0}, s{S_WAVE}
        s_cmp_lg_u32 s{S_T0}, 1
        s_cbranch_scc1 L_cok
        v_cmp_ne_u32 s[{S_PC}:{S_PC+1}], s{S_TAG}, v8
        s_cmp_lg_u64 s[{S_PC}:{S_PC+1}], 0
        s_cbranch_scc1 L_cspin
        L_cok:""")
        a.late.append(lambda: a(f"""L_cspin:
        s_mov_b32 s{S_CNT}, 0
        L_cspin1:
        s_sleep 4
        buffer_load_dword v8, v{FCO}, {sr(R_WS,4)}, s{S_Y0} offen {SC}
        s_add_u32 s{S_CNT}, s{S_CNT}, 1
        s_waitcnt vmcnt(0)
        v_cmp_ne_u32 s[{S_PC}:{S_PC+1}], s{S_TAG}, v8
        s_cmp_eq_u64 s[{S_PC}:{S_PC+1}], 0
        s_cbranch_scc1 L_cok
        s_cmp_lt_u32 s{S_CNT}, {1 << 22}
        s_cbranch_scc1 L_cspin1
        s_branch L_cok"""))
        arrive(0)
    add(YP + 3, "B", c_check)
    add(YP + 4, "Z", lambda: peek(0))
    def y_dma():
        passed(0)
        a(f"""s_lshr_b32 s{S_T0}, s{S_LIN}, 5
        s_lshl_b32 s{S_T0}, s{S_T0}, 18
        s_and_b32 s{S_T1}, s{S_LIN}, 31
        s_lshl_b32 s{S_T1}, s{S_T1}, 7
        s_add_u32 s{S_T0}, s{S_T0}, s{S_T1}
        s_add_u32 m0, s{S_M0}, {L_YT}
        s_add_u32 s{S_T0}, s{S_T0}, {WS_YT}""")
        T["yd"] = a.vm(f"buffer_load_dwordx4 v{YV}, {sr(R_WS,4)}, s{S_T0} offen {SC} lds")
    assert YP + 5 <= EARLY + 2*8 - 3
    add(YP + 5, "A", y_dma)
    add(YP + 8, "B", lambda: (a.wait_v(T["yd"]), arrive(1)))
    add(YP + 9, "Z", lambda: peek(1))
    def y_tr():
        passed(1)
        a.lds(f"ds_read_b64_tr_b16 v[4:5], v{YTR}")
        T["ytr"] = a.lds(f"ds_read_b64_tr_b16 v[6:7], v{YTR} offset:512")
    add(YP + 10, "A", y_tr)
    def y_perm():
        a(f"""s_mul_i32 s{S_T0}, s{S_WAVE}, 2304
        s_add_u32 s{S_T0}, s{S_T0}, {L_XB}
        v_add_u32 v2, s{S_T0}, v{V_L16}""")
        a.wait_l(T["ytr"])
        a.lds(f"ds_write_b128 v{YPW}, v[4:7]")
        T["ypr"] = a.lds(f"ds_read_b128 v[4:7], v2")
    add(YP + 10, "Z", y_perm)
    def y_out():
        a(f"""s_and_b32 s{S_T0}, s{S_LIN}, 31
        s_lshl_b32 s{S_T0}, s{S_T0}, 17
        s_lshl_b32 s{S_T1}, s{S_WAVE}, 14
        s_add_u32 s{S_T0}, s{S_T0}, s{S_T1}
        s_lshr_b32 s{S_T1}, s{S_LIN}, 5
        s_lshl_b32 s{S_T1}, s{S_T1}, 7
        s_add_u32 s{S_T0}, s{S_T0}, s{S_T1}""")
        a.wait_l(T["ypr"])
        a(f"""s_bitcmp1_b32 s{S_ST}, 3
        s_cbranch_scc1 L_noyo
        buffer_store_dwordx4 v[4:7], v{YST}, {sr(R_OUT,4)}, s{S_T0} offen {OPT.get('ysc','').replace('+',' ')}
        L_noyo:""")
    add(YP + 11, "B", y_out)
    def wload(r, i):
        def f():
            t4, half, j = i // 8, (i // 4) % 2, i % 4
            reg = A_W + t4*32 + half*16 + j*4
            if OPT.get("now"):
                T[("w", r, i)] = 0; return
            T[("w", r, i)] = a.vm(f"buffer_load_dwordx4 {vr(reg,4)}, v{V_L16}, {sr(R_WS,4)}, s{S_W0} offen offset:{1024*j} {OPT.get('wsc', SC)}")
            if j == 3: a(f"s_add_u32 s{S_W0}, s{S_W0}, {4096 if half == 0 else 65536 - 4096}")
        return f
    def spread(r, s0, s1, both):
        slots = []
        for s in range(s0, s1):
            if both(s): slots.append((s, OPT.get("slot2", "C")))
            slots.append((s, "C"))
        assert len(slots) >= 32, len(slots)
        for i in range(32):
            s, sl = slots[(i * len(slots)) // 32]
            add(s, sl, wload(r, i))
    grp[0] = "w"
    spread(0, 3, 35, lambda s: False)
    grp[0] = "rb"
    def crew():
        a(f"""s_bitcmp0_b32 s{S_ST}, 1
        s_cbranch_scc1 L_nocrew
        v_mov_b32 v2, v{A_M1}
        v_mov_b32 v3, v{A_M1}""")
        for i in range(0, 16, 2): a(f"v_mov_b64 {vr(A_C+i,2)}, v[2:3]")
        a("L_nocrew:")
    add(30, "C", crew)
    def fl_addr():
        a(f"""s_mul_i32 s{S_T0}, s{S_WAVE}, 2304
        s_add_u32 s{S_T0}, s{S_T0}, {L_XB}
        v_add_u32 v2, s{S_T0}, v{V_L16}
        v_lshl_add_u32 v3, v1, 2, s{S_T0}""")
    def fl_write():
        a.lds(f"ds_write_b128 v2, {vr(A_O,4)}")
        a.lds(f"ds_write_b128 v2, {vr(A_O+4,4)} offset:1024")
        T["fl"] = a.lds(f"ds_write_b32 v3, v{A_O+8} offset:2048")
    def o_zero():
        for i in range(0, 10, 2): a(f"v_mov_b64 {vr(A_O+i,2)}, 0")
    def fin_read(rnd):
        a(f"""s_and_b32 s{S_T0}, s{S_WAVE}, 3
        s_mul_i32 s{S_T1}, s{S_T0}, 2304
        s_add_u32 s{S_T1}, s{S_T1}, {L_XB}
        s_lshl_b32 s{S_T2}, s{S_KAP}, 10
        s_add_u32 s{S_T2}, s{S_T2}, s{S_T1}
        v_add_u32 v2, s{S_T2}, v{V_L16}
        v_lshl_add_u32 v3, v1, 2, s{S_T1}""")
        if rnd == 0:
            passed(2)
        else:
            a.wait_l(T["fl"])
            a("s_barrier")
        a.lds(f"ds_read_b32 v8, v3 offset:2048")
        a.lds(f"ds_read_b32 v9, v3 offset:{2048 + 4*2304}")
        a.lds(f"ds_read_b128 v[4:7], v2")
        T["fin"] = a.lds(f"ds_read_b128 {vr(A_AF,4)}, v2 offset:{4*2304}")
        a(f"""v_and_b32 v2, 31, v1
        v_lshlrev_b32 v2, 5, v2
        v_lshrrev_b32 v3, 5, v1
        v_lshl_add_u32 v2, v3, 4, v2
        s_lshl_b32 s{S_T0}, s{S_T0}, 10
        s_lshl_b32 s{S_T1}, s{S_KAP}, 3
        s_add_u32 s{S_T0}, s{S_T0}, s{S_T1}
        s_add_u32 s{S_T0}, s{S_T0}, {L_OA + rnd*4096}
        v_add_u32 v2, s{S_T0}, v2""")
    def fin_math():
        a.wait_l(T["fin"])
        a(f"""v_add_f32 v8, v8, v9
        v_rcp_f32 v8, v8
        v_pk_add_f32 v[4:5], v[4:5], {vr(A_AF,2)}
        v_pk_add_f32 v[6:7], v[6:7], {vr(A_AF+2,2)}
        v_pk_mul_f32 v[4:5], v[4:5], v[8:9] op_sel_hi:[1,0]
        v_pk_mul_f32 v[6:7], v[6:7], v[8:9] op_sel_hi:[1,0]
        v_cvt_pk_bf16_f32 v4, v4, v5
        v_cvt_pk_bf16_f32 v5, v6, v7""")
        T["oa"] = a.lds(f"ds_write_b64 v2, v[4:5]")
    add(32, "A", fl_addr)
    add(32, "C", lambda: (fl_write(), arrive(2), o_zero()))
    FS_ = OPT.get("fin", 35)
    add(FS_ - 1, "Z", lambda: peek(2))
    add(FS_, "A", lambda: fin_read(0))
    add(FS_, "C", lambda: (fin_math(), arrive(3)))
    PJ = OPT.get("pj", 38)
    add(PJ - 1, "Z", lambda: peek(3))
    def pj_begin():
        a(f"v_add_u32 v2, {L_OA}, v{V_L16}")
        passed(3)
        T[("af", 0)] = a.lds(f"ds_read_b128 {vr(A_AF,4)}, v2")
        T[("af", 1)] = a.lds(f"ds_read_b128 v[4:7], v2 offset:1024")
    add(PJ, "A", pj_begin)
    for t4 in range(4):
        F = A_AF if t4 % 2 == 0 else 4
        def sm(t4, F, cts):
            def f():
                a.wait_l(T[("af", t4)])
                a.wait_v(T[("w", 0, t4*8 + 7)])
                for ct in cts:
                    a(f"v_smfmac_f32_16x16x64_bf16 {vr(A_ACC+4*ct,4)}, {vr(F,4)}, {vr(A_W + t4*32 + ct*8, 8)}, v{A_IDX2}")
            return f
        add(PJ + t4, "B", sm(t4, F, (0, 1)))
        add(PJ + t4, "C", sm(t4, F, (2, 3)))
        if t4 + 2 < 4:
            def rd(t4=t4, F=F):
                T[("af", t4 + 2)] = a.lds(f"ds_read_b128 {vr(F,4)}, v2 offset:{1024*(t4+2)}")
            add(PJ + t4 + 1, "A", rd)
    grp[0] = "w"
    spread(1, PJ + 1, 62, lambda s: s >= PJ + 4 and s % 2 == 0)
    grp[0] = "misc"
    ep_store = f"""v_mov_b32 v2, 0
    v_mov_b32 v3, s{S_TAG}
    s_mov_b32 s{S_T0}, {WS_EP}
    s_mov_b64 exec, 1
    buffer_store_dword v3, v2, {sr(R_WS,4)}, s{S_T0} offen {SC}
    s_mov_b64 exec, -1"""
    add(20, "A", lambda: a(f"""s_or_b32 s{S_T0}, s2, s{S_WAVE}
    s_or_b32 s{S_T0}, s{S_T0}, s{S_FB}
    s_cmp_lg_u32 s{S_T0}, 0
    s_cbranch_scc1 L_noep0
    {ep_store}
    L_noep0:"""))
    def ep_load():
        a(f"v_mov_b32 v{A_M1}, {WS_EP}")
        T["ep"] = a.vm(f"buffer_load_dword v{A_M1}, v{A_M1}, {sr(R_WS,4)}, 0 offen {SC}")
    add(58, "Z", ep_load)

    a.reset(); a.nl = 11; a.dl = 3; a.nv = 1
    tK = 11; tV = 5
    a(f"""s_nop 0
    v_exp_f32 v{A_S0}, v{A_S0}
    v_exp_f32 v{A_S0+1}, v{A_S0+1}""")
    a(f"s_mov_b32 vcc_lo, s{S_KAP}\ns_mov_b32 vcc_hi, 0")
    a.stamp("r0start")
    a(".p2align 3")
    for s in range(NS):
        S, Sn = (A_S0, A_S1) if s % 2 == 0 else (A_S1, A_S0)
        Vc, Vn = (A_V0, A_V1) if s % 2 == 0 else (A_V1, A_V0)
        last = s == NS - 1
        def E(R, i):
            flip = OPT.get("flip", 0)
            fl_on = flip and (s % flip) == flip - 1 if flip > 0 else (flip and (s % -flip) != 0)
            if i == OPT["prio_lo"]:
                a("s_setprio 0")
                if fl_on and OPT.get("fliplo"):
                    lab = a.label("pf"); a(f"s_cbranch_vccz {lab}\ns_setprio 1\n{lab}:")
            if i == OPT["prio_hi"]:
                a("s_setprio 2")
                if fl_on:
                    lab = a.label("pf"); a(f"s_cbranch_vccz {lab}\ns_setprio 3\n{lab}:")
            a(f"v_exp_f32 v{R+i}, v{R+i}")
        off = lambda step: (step % 16) * 4096
        a.c(f"step {s}")
        if (s + 1) % 16 == 0 and not last:
            a(f"v_mov_b32 v{A_ADDR}, v0")
        tVc = tV
        if not last:
            a(f"s_mov_b64 exec, {sr(S_VMASK,2)}")
            a.lds(f"ds_read_b128 {vr(Vn,4)}, v{A_ADDR} offset:{off(s+1) + 1024}")
            tV = a.lds(f"ds_read_b128 {vr(Vn+4,4)}, v{A_ADDR} offset:{off(s+1) + 1280}")
            a("s_mov_b64 exec, -1")
        E(S, 2); E(S, 3); E(S, 4)
        a.wait_l(max(tK, tVc))
        for f in ins[s]["A"]: f()
        if not last:
            Q = A_Q0 if s + 1 < 32 else A_Q1
            a(f"v_mfma_f32_32x32x16_bf16 {vr(Sn,16)}, {vr(A_K,4)}, {vr(Q,4)}, {vr(A_C,16)}")
            if s + 2 < NS:
                if (s + 2) % 16 == 0:
                    a(f"v_xor_b32 v0, 0x10000, v{A_ADDR}")
                    tK = a.lds(f"ds_read_b128 {vr(A_K,4)}, v0 offset:{off(s+2)}")
                else:
                    tK = a.lds(f"ds_read_b128 {vr(A_K,4)}, v{A_ADDR} offset:{off(s+2)}")
        for i in range(5, 9): E(S, i)
        for f in ins[s]["B"]: f()
        E(S, 9); E(S, 10)
        pvlo = f"v_smfmac_f32_32x32x32_bf16 {vr(A_O,16)}, {vr(Vc,4)}, {vr(S,8)}, v{A_IDX}"
        if s != 32: a(pvlo)
        for i in range(11, 14): E(S, i)
        for f in ins[s]["C"]: f()
        E(S, 14); E(S, 15)
        if s == 32: a(pvlo)
        for f in ins[s]["Z"]: f()
        if not last:
            E(Sn, 0); E(Sn, 1)
        else:
            fl_addr()
        a(f"v_smfmac_f32_32x32x32_bf16 {vr(A_O,16)}, {vr(Vc+4,4)}, {vr(S+8,8)}, v{A_IDX}")
        if s in (15, 31, 47): a.stamp(f"step{s}")
    a.stamp("r1end")
    a("s_setprio 0\ns_nop 10")
    fl_write()
    fin_read(1)
    fin_math()
    a(f"v_add_u32 v2, {L_OA + 4096}, v{V_L16}")
    a.wait_l(T["oa"])
    a("s_barrier")
    a.stamp("fin1")
    FR = [A_AF, 4, A_S0, A_S0 + 4]
    tk = [a.lds(f"ds_read_b128 {vr(FR[t4],4)}, v2 offset:{1024*t4}") for t4 in range(4)]
    a(f"""v_lshrrev_b32 v2, 4, v1
    v_lshlrev_b32 v2, 12, v2
    v_and_b32 v3, 15, v1
    v_lshl_add_u32 v2, v3, 3, v2
    s_lshl_b32 s{S_T0}, s{S_LIN}, 14
    s_lshl_b32 s{S_T1}, s{S_WAVE}, 7
    s_add_u32 s{S_T0}, s{S_T0}, s{S_T1}
    s_waitcnt vmcnt(0)
    v_readfirstlane_b32 s{S_T1}, v{A_M1}""")
    for t4 in range(4):
        a.wait_l(tk[t4])
        for ct in range(4):
            a(f"v_smfmac_f32_16x16x64_bf16 {vr(A_ACC+4*ct,4)}, {vr(FR[t4],4)}, {vr(A_W + t4*32 + ct*8, 8)}, v{A_IDX2}")
    a("s_nop 4")
    for ct in range(4):
        a(f"""v_add_f32 v{A_ACC+4*ct}, v{A_ACC+4*ct}, v{A_ACC+4*ct+1}
        v_add_f32 v{A_ACC+4*ct+2}, v{A_ACC+4*ct+2}, v{A_ACC+4*ct+3}""")
    a(f"""v_cvt_pk_bf16_f32 v4, v{A_ACC}, v{A_ACC+4}
    v_cvt_pk_bf16_f32 v5, v{A_ACC+8}, v{A_ACC+12}
    v_cvt_pk_bf16_f32 v6, v{A_ACC+2}, v{A_ACC+6}
    v_cvt_pk_bf16_f32 v7, v{A_ACC+10}, v{A_ACC+14}
    buffer_store_dwordx2 v[4:5], v2, {sr(R_OUT,4)}, s{S_T0} offen offset:1024 {OPT.get('osc','').replace('+',' ')}
    buffer_store_dwordx2 v[6:7], v2, {sr(R_OUT,4)}, s{S_T0} offen offset:3072 {OPT.get('osc','').replace('+',' ')}
    s_or_b32 s{S_T0}, s{S_WAVE}, s{S_FB}
    s_cmp_lg_u32 s{S_T0}, 0
    s_cbranch_scc1 L_noep1
    s_cmp_eq_u32 s{S_T1}, s{S_TAG}
    s_cbranch_scc1 L_noep1
    {ep_store}
    L_noep1:""")


def build():
    a = Asm()
    if OPT["diag"]:
        a(f"v_mov_b32 v{V_STAMP}, 0")
    a.stamp("start")
    prologue(a)
    a("L_phase1:")
    round1(a)
    a.stamp("iss1")
    pre_a(a)
    pre_b(a)
    pre_c(a)
    pre_dt(a)
    a.stamp("pre")
    a(f"""s_cmp_ge_u32 s{S_WAVE}, 4
    s_cbranch_scc1 L_xw""")
    a(dma2("w", 0)); a(dma2("w", 1))
    a.c("wave 0: wo tile; wave 1: this workgroup's 1KB share of wk / wv (brings it into L2 for the whole die)")
    a(f"""s_waitcnt vmcnt(6)
    s_cmp_lg_u32 s{S_WAVE}, 0
    s_cbranch_scc1 L_nowo
    s_lshl_b32 s{S_T0}, s{S_RB}, 14
    s_mov_b32 m0, {L_WOT}
    s_add_u32 s{S_T0}, s{S_T0}, s{S_WO_}
    buffer_load_dwordx4 v{HW0}, {sr(R_WO,4)}, s{S_T0} offen lds
    s_mov_b32 m0, {L_WOT + 1024}
    s_nop 0
    buffer_load_dwordx4 v{HW1}, {sr(R_WO,4)}, s{S_T0} offen lds
    L_nowo:
    s_cmp_lg_u32 s{S_WAVE}, {2 if OPT.get("ftouch", 1) else 99}
    s_cbranch_scc1 L_noft
    s_lshl_b32 s{S_T0}, s{S_LIN}, 7
    s_lshl_b32 s{S_T1}, s2, 3
    v_mov_b32 v2, {WS_FA}
    v_mov_b32 v3, {WS_FC}
    v_mov_b32 v4, {WS_FB}
    s_mov_b64 exec, 1
    buffer_load_dword v248, v2, {sr(R_WS,4)}, s{S_T0} offen {SC}
    buffer_load_dword v248, v3, {sr(R_WS,4)}, s{S_T0} offen {SC}
    buffer_load_dword v248, v4, {sr(R_WS,4)}, s{S_T1} offen {SC}
    s_mov_b64 exec, -1
    L_noft:
    s_cmp_lg_u32 s{S_WAVE}, 1
    s_cbranch_scc1 L_pland
    s_bfe_u32 s{S_T0}, s{S_TASK}, 0x40001
    s_lshl_b32 s{S_T0}, s{S_T0}, 10
    v_lshlrev_b32 v2, 7, v1
    s_mov_b64 exec, 0xff
    buffer_load_dword v248, v2, {sr(R_WKV,4)}, s{S_T0} offen
    s_mov_b64 exec, -1
    s_branch L_pland
    L_xw:
    s_waitcnt vmcnt(2)
    L_pland:""")
    a.stamp("land1")
    kg_valu(a)
    a.stamp("kgv")
    a(f"""s_cmp_lt_u32 s{S_WAVE}, 4
    s_cbranch_scc1 L_nou
    s_waitcnt vmcnt(0)""")
    phase_u(a)
    a("""L_nou:
    s_waitcnt lgkmcnt(0)
    s_barrier""")
    a.stamp("Bk1")
    kg_mfma(a)
    a(f"""v_readfirstlane_b32 s{S_T0}, v{V_EP}
    s_mul_i32 s{S_T0}, s{S_T0}, 0x0019660d
    s_add_u32 s{S_T0}, s{S_T0}, 0x3c6ef35f""")
    if OPT["force_fb"]:
        a(f"s_add_u32 s{S_T0}, s{S_T0}, s2")
    a(f"""s_cmp_eq_u32 s{S_FB}, 0
    s_cselect_b32 s{S_TAG}, s{S_T0}, s{S_TAG}
    v_mov_b32 v{V_NQ}, 0
    v_mov_b32 v{V_NK}, 0
    s_nop 1""")
    kg_copy0(a)
    a("s_waitcnt lgkmcnt(0)\ns_barrier")
    a.stamp("Bk3")
    kg_expand_read(a)
    a(f"""s_cmp_ge_u32 s{S_WAVE}, 4
    s_cbranch_scc1 L_gload""")
    a.c("================ compute waves ================")
    a("s_waitcnt lgkmcnt(0)")
    kg_expand_math(a)
    a("s_waitcnt vmcnt(0)\ns_barrier")
    a.stamp("BG0")
    g_comp(a, 0)
    a("s_barrier")
    a.stamp("BG1")
    g_comp(a, 1)
    for r in (GA, GB0, GB1, GKX0, GKX1):
        a(f"v_add_u32 v{r}, 0x10000, v{r}")
    a("s_barrier")
    a.stamp("BG2")
    g_comp(a, 2)
    a("s_barrier")
    a.stamp("BG3")
    g_comp(a, 3)
    q_epilogue(a)
    kg_expand_write(a)
    a("s_branch L_gjoin\nL_gload:")
    a.c("================ loader waves ================")
    for i in range(2):
        a(f"""s_lshr_b32 s{S_T0}, s{S_M1}, 10
        s_add_u32 s{S_T0}, s{S_T0}, s{S_C0}
        s_add_u32 s{S_T0}, s{S_T0}, {i}
        s_and_b32 s{S_T0}, s{S_T0}, 7
        s_lshl_b32 s{S_T1}, s{S_M1}, 1
        s_add_u32 m0, s{S_T1}, {L_WKV + 2048*i}
        s_lshl_b32 s{S_T0}, s{S_T0}, 11
        buffer_load_dwordx4 v{V_L16}, {sr(R_WKV,4)}, s{S_T0} offen lds
        buffer_load_dwordx4 v{V_L16}, {sr(R_WKV,4)}, s{S_T0} offen offset:1024 lds""")
    a(dma2("x", 1))
    def pair(p):
        for pos in (2*p, 2*p+1):
            a(dma2("x", pos)); a(dma2("w", pos))
    pair(1)
    a("s_waitcnt vmcnt(8)")
    signal_a(a, 8)
    a("s_barrier")
    a.stamp("BG0")
    pair(2)
    g_kv(a, 0)
    a.c("(one flag store sits between chunk 3 and chunk 4 except in fallback mode)")
    a(f"""s_cmp_eq_u32 s{S_FB}, 0
    s_waitcnt vmcnt(9) lgkmcnt(0)
    s_cbranch_scc1 L_bg1
    s_waitcnt vmcnt(8)
    L_bg1:
    s_barrier""")
    a.stamp("BG1")
    a(f"""s_cmp_lg_u32 s{S_WAVE}, 7
    s_cbranch_scc1 L_npa""")
    poll_a_issue(a)
    a("L_npa:")
    pair(3)
    g_kv(a, 1)
    kg_expand_math(a)
    for r in (GB0, GB1):
        a(f"v_add_u32 v{r}, 0x10000, v{r}")
    a(f"""s_cmp_eq_u32 s{S_WAVE}, 7
    s_waitcnt vmcnt(9)
    s_cbranch_scc1 L_bg2
    s_waitcnt vmcnt(8)
    L_bg2:
    s_barrier""")
    a.stamp("BG2")
    g_kv(a, 2)
    kg_expand_write(a)
    a(f"""s_cmp_lg_u32 s{S_WAVE}, 7
    s_cbranch_scc1 L_nta
    s_waitcnt vmcnt(8)""")
    poll_a_try(a)
    a(f"""s_cmp_lg_u32 s{S_W1}, 0
    s_cbranch_scc1 L_nta
    s_waitcnt vmcnt(8)
    s_branch L_bg3
    L_nta:
    s_waitcnt vmcnt(0)
    L_bg3:
    s_barrier""")
    a.stamp("BG3")
    g_kv(a, 3)
    a("s_nop 4")
    kv_epilogue(a)
    phase_wt(a)
    a("L_gjoin:")
    a.stamp("gepi")
    a.c("fallback mode: this workgroup produces every task's output itself")
    a(f"""s_cmp_eq_u32 s{S_FB}, 0
    s_cbranch_scc1 L_p1done
    s_add_u32 s{S_TASK}, s{S_TASK}, 1
    s_waitcnt vmcnt(0) lgkmcnt(0)
    s_barrier
    v_and_b32 v2, 255, v0
    v_lshlrev_b32 v2, 1, v2
    s_lshl_b32 s{S_T0}, s{S_LIN}, 9
    v_add_u32 v9, s{S_T0}, v2
    s_cmp_lt_u32 s{S_TASK}, 256
    s_cbranch_scc1 L_phase1
    s_mov_b32 s{S_W1}, 1
    L_p1done:""")
    a.c("norm words (rounded up to bf16): q half-row norm | k norm")
    a(f"""v_add_u32 v{V_NQ}, 0xffff, v{V_NQ}
    v_add_u32 v{V_NK}, 0xffff, v{V_NK}
    v_lshlrev_b32 v2, 2, v0
    v_and_b32 v{V_NQ}, 0xffff0000, v{V_NQ}
    v_lshrrev_b32 v{V_NK}, 16, v{V_NK}
    v_or_b32 v{V_NQ}, v{V_NQ}, v{V_NK}
    ds_write_b32 v2, v{V_NQ} offset:{L_NRM}
    s_cmp_lg_u32 s{S_WAVE}, 7
    s_cbranch_scc1 L_b4
    s_cmp_lg_u32 s{S_W1}, 0
    s_cbranch_scc1 L_upend
    s_waitcnt vmcnt(0)
    L_uok:
    ds_write_b128 v{URW}, {vr(UR_LD,4)}
    ds_write_b128 v{URW}, {vr(UR_LD+4,4)} offset:{8*80}
    ds_write_b128 v{URW}, {vr(UR_LD+8,4)} offset:{16*80}
    ds_write_b128 v{URW}, {vr(UR_LD+12,4)} offset:{24*80}
    ds_write_b128 v{URW}, {vr(UR_LD+16,4)} offset:{32*80}
    ds_write_b128 v{URW}, {vr(UR_LD+20,4)} offset:{40*80}
    ds_write_b128 v{URW}, {vr(UR_LD+24,4)} offset:{48*80}
    ds_write_b128 v{URW}, {vr(UR_LD+28,4)} offset:{56*80}
    L_b4:
    s_waitcnt lgkmcnt(0)
    s_barrier""")
    a.stamp("B4")
    a(f"""s_cmp_ge_u32 s{S_WAVE}, 4
    s_cbranch_scc1 L_nocv""")
    cv_run(a)
    a(f"""s_branch L_cvdone
    L_nocv:
    s_setprio 3
    {ack_add()}""")
    loader_b(a)
    a("s_setprio 0\nL_cvdone:")
    a.stamp("conv")
    a("s_waitcnt lgkmcnt(0)\ns_barrier")
    a.stamp("B5")
    at_begin(a)
    attention(a)
    if OPT["diag"]: a("s_waitcnt vmcnt(0)")
    a.stamp("stored")
    a.stamp_dump()
    a("L_end:\ns_endpgm")
    at_slow(a)
    if "ep" not in OPT.get("off", "").split("+"): y_scatter(a)
    for f in a.late: f()
    a("L_upend:")
    poll_a_finish(a)
    a("s_branch L_uok")
    a(f"""L_fallback:
    s_and_b32 s{S_FB}, s{S_ST}, 12
    s_or_b32 s{S_FB}, s{S_FB}, 16
    s_mov_b32 s{S_TOF}, 0
    s_mov_b32 s{S_TASK}, 0
    v_and_b32 v2, 255, v0
    v_lshlrev_b32 v2, 1, v2
    s_lshl_b32 s{S_T0}, s{S_LIN}, 9
    v_add_u32 v9, s{S_T0}, v2
    s_waitcnt vmcnt(0) lgkmcnt(0)
    s_barrier
    s_branch L_phase1
    L_code_end:""")

    hdr = open(f"cdna_kernels/{NAME}.s.ref").read().split("; Override launch")[0]
    kn = NAME + "_kernel"
    out = hdr
    out += f"; @launch grid=(256,1,1) block=(512,1,1) lds={LDS_BYTES}\n"
    out += '.amdgcn_target "amdgcn-amd-amdhsa--gfx950"\n.text\n'
    out += f".globl {kn}\n.p2align 8\n.type {kn},@function\n{kn}:\n" + a.text()
    out += f""".section .rodata,"a"
.p2align 6
.amdhsa_kernel {kn}
  .amdhsa_next_free_vgpr 256
  .amdhsa_next_free_sgpr 102
  .amdhsa_accum_offset 256
  .amdhsa_group_segment_fixed_size 0
  .amdhsa_kernarg_size 136
  .amdhsa_user_sgpr_count 2
  .amdhsa_user_sgpr_kernarg_segment_ptr 1
  .amdhsa_system_sgpr_workgroup_id_x 1
.end_amdhsa_kernel
"""
    return out


if __name__ == "__main__":
    dst = sys.argv[1] if len(sys.argv) > 1 else f"cdna_kernels/{NAME}.s"
    for o in sys.argv[2:]:
        k, _, v = o.partition("=")
        OPT[k] = (int(v) if v.lstrip("-").isdigit() else v) if v else True
    txt = build()
    open(dst, "w").write(txt)
    print("wrote", dst, len(txt), "bytes")
```
